```python
import torch

def _softmax(x, axis=-1):
    return torch.softmax(x, dim=axis)
def _gelu(x):
    return torch.nn.functional.gelu(x, approximate="tanh")
def _silu(x):
    return torch.nn.functional.silu(x)
def _sigmoid(x):
    return torch.sigmoid(x)
def _layernorm(x, axis=-1, eps=1e-5):
    m = x.mean(dim=axis, keepdim=True)
    v = x.var(dim=axis, keepdim=True, unbiased=False)
    return (x - m) / torch.sqrt(v + eps)
def _scatter_add(tgt, idx, src, axis=0):
    return tgt.clone().index_add_(axis, idx, src)
def _segment_sum(src, seg, n):
    out = torch.zeros((n,) + src.shape[1:], dtype=src.dtype)
    return out.index_add_(0, seg, src)
def _pad(x, pw):
    flat = tuple(v for pair in reversed(pw) for v in pair)
    return torch.nn.functional.pad(x, flat)

kernel_name = 'parallel_sum__sliding_block_cached__mixer_channel_mlp__decode'

def setup_inputs():

    _w = (lambda a: (lambda t: t.to(torch.bfloat16) if t.is_floating_point() else t)(torch.as_tensor(a)))
    def _A_setup():
        B, Sq, D = 1, 1, 448
        Hq, Hkv, Sk, Dh = 16, 8, 8192, 256
        assert Hq % Hkv == 0, (Hq, Hkv)
        return {
            "x": _w((lambda *s: torch.randn(*s, dtype=torch.bfloat16) * 0.05)(B, Sq, D)),
            "k_cache": _w((lambda *s: torch.randn(*s, dtype=torch.bfloat16) * 3.2)(B, Hkv, Sk, Dh)),
            "v_cache": _w((lambda *s: torch.randn(*s, dtype=torch.bfloat16) * 0.4)(B, Hkv, Sk, Dh)),
            "wq": _w((lambda *s: torch.randn(*s, dtype=torch.bfloat16) * 3.2)(D, Hq * Dh) * (D ** -0.5)),
            "wo": _w((lambda *s: torch.randn(*s, dtype=torch.bfloat16) * 0.4)(Hq * Dh, D) * ((Hq * Dh) ** -0.5)),
        }
    _A_in = _A_setup()

    def _B_setup():
        B, S, D, F = 1, 1, 448, 1792
        return {
            "x": _w((lambda *s: torch.randn(*s, dtype=torch.bfloat16) * 0.05)(B, S, D)),
            "w1": _w((lambda *s: torch.randn(*s, dtype=torch.bfloat16) * 3.2)(D, F) * (D ** -0.5)),
            "b1": _w((lambda *s: torch.randn(*s, dtype=torch.bfloat16) * 1.6)(F)),
            "w2": _w((lambda *s: torch.randn(*s, dtype=torch.bfloat16) * 0.05)(F, D) * (F ** -0.5)),
            "b2": _w((lambda *s: torch.randn(*s, dtype=torch.bfloat16) * 0.05)(D)),
        }
    _B_in = _B_setup()

    return {
        "A_x": _A_in["x"],
        "A_k_cache": _A_in["k_cache"],
        "A_v_cache": _A_in["v_cache"],
        "A_wq": _A_in["wq"],
        "A_wo": _A_in["wo"],
        "B_x": _B_in["x"],
        "B_w1": _B_in["w1"],
        "B_b1": _B_in["b1"],
        "B_w2": _B_in["w2"],
        "B_b2": _B_in["b2"],
    }

def reference(A_x, A_k_cache, A_v_cache, A_wq, A_wo, B_x, B_w1, B_b1, B_w2, B_b2):
    def _A_ref(x, k_cache, v_cache, wq, wo):
        B, Sq, D = x.shape
        Hq, Dh = 16, 256
        Hkv, Sk = k_cache.shape[1], k_cache.shape[2]
        W = min(4096, max(256, Sk // 4))
        rep = Hq // Hkv
        q = (lambda x, *d: x.permute(*d))((x @ wq).reshape(B, Sq, Hq, Dh), 0, 2, 1, 3)
        k = (lambda x, n, axis: torch.repeat_interleave(x, n, dim=axis))(k_cache[:, :, Sk - W:, :], rep, axis=1)
        v = (lambda x, n, axis: torch.repeat_interleave(x, n, dim=axis))(v_cache[:, :, Sk - W:, :], rep, axis=1)
        scores = torch.einsum("bhqd,bhkd->bhqk", q, k) * (Dh ** -0.5)
        p = _softmax(scores, axis=-1)
        o = torch.einsum("bhqk,bhkd->bhqd", p, v)
        return (lambda x, *d: x.permute(*d))(o, 0, 2, 1, 3).reshape(B, Sq, Hq * Dh) @ wo

    def _B_ref(x, w1, b1, w2, b2):
        y = _layernorm(x, axis=-1)
        h = _gelu(torch.einsum("bsd,df->bsf", y, w1) + b1)
        return torch.einsum("bsf,fd->bsd", h, w2) + b2

    x = A_x
    xn = _layernorm(x, axis=-1)
    return x + _A_ref(xn, A_k_cache, A_v_cache, A_wq, A_wo) + _B_ref(xn, B_w1, B_b1, B_w2, B_b2)
```

```python
NAME = "parallel_sum__sliding_block_cached__mixer_channel_mlp__decode"
HEADER_COMMENT = open("cdna_kernels/%s.s.ref" % NAME).read().split("; Override launch geometry")[0]

class Asm:
    def __init__(self):
        self.lines = []
        self.nlabel = 0
    def __call__(self, s):
        for ln in s.strip("\n").split("\n"):
            if not ln.strip(): continue
            self.lines.append("    " + ln.strip() if not ln.strip().endswith(":") else ln.strip())
    def label(self, base="L"):
        self.nlabel += 1
        return "%s_%d" % (base, self.nlabel)
    def text(self):
        return "\n".join(self.lines) + "\n"

def wrap(body, grid, block, lds, vgpr, sgpr=102, name=NAME + "_kernel"):
    acc = (vgpr + 3) // 4 * 4
    return (HEADER_COMMENT +
f"""; @launch grid=({grid},1,1) block=({block},1,1) lds={lds}
.amdgcn_target "amdgcn-amd-amdhsa--gfx950"
.text
.globl {name}
.p2align 8
.type {name},@function
{name}:
{body}
.section .rodata,"a"
.p2align 6
.amdhsa_kernel {name}
  .amdhsa_next_free_vgpr {vgpr}
  .amdhsa_next_free_sgpr {sgpr}
  .amdhsa_accum_offset {acc}
  .amdhsa_group_segment_fixed_size 0
  .amdhsa_kernarg_size 104
  .amdhsa_user_sgpr_count 2
  .amdhsa_user_sgpr_kernarg_segment_ptr 1
  .amdhsa_system_sgpr_workgroup_id_x 1
.end_amdhsa_kernel
""")
```

```python
import sys
from asmlib import *

SYNC = 0; OL = 64; SL = 128; QL = 512; XNL = 2048; WQL = 10240; WCL = 24576; W1L = 46080
KL = 53248; VL = 86016; LDS_TOTAL = 118784
QG = 0x1000; HG = 0x12000; MLG = 0x1A000; OG = 0x20000; P3 = 0x100000
STAMP = 0x8000000
SPIN_MAX = 200000
LOG2E = 1.4426950408889634
import struct
def f2u(f): return struct.unpack("<I", struct.pack("<f", f))[0]

def gen(cap=16, stamps=False, rot=True):
    a = Asm()
    nst = [0]
    def stamp(k):
        if stamps: a(f"s_memrealtime s[{70+2*k}:{71+2*k}]")
    a("s_cmp_ge_u32 s2, 256\ns_cbranch_scc1 L_end")
    stamp(0)
    a("""
    s_load_dwordx2 s[36:37], s[0:1], 96
    s_load_dwordx2 s[20:21], s[0:1], 24
    s_load_dwordx2 s[8:9], s[0:1], 0
    s_load_dwordx2 s[28:29], s[0:1], 48
    s_load_dwordx2 s[12:13], s[0:1], 8
    s_load_dwordx2 s[16:17], s[0:1], 16
    s_load_dwordx2 s[24:25], s[0:1], 32
    s_load_dwordx2 s[32:33], s[0:1], 64
    s_load_dwordx2 s[40:41], s[0:1], 80
    s_load_dwordx2 s[44:45], s[0:1], 56
    s_load_dwordx2 s[48:49], s[0:1], 72
    v_lshrrev_b32 v1, 6, v0
    v_and_b32 v0, 63, v0                 ; lane
    s_mov_b32 s10, 896
    v_readfirstlane_b32 s3, v1
    s_mov_b32 s11, 0x20000
    s_mov_b32 s14, 0x2000000
    s_mov_b32 s15, 0x20000
    s_mov_b32 s18, 0x2000000
    s_mov_b32 s19, 0x20000
    s_mov_b32 s22, 3670016
    s_mov_b32 s23, 0x20000
    s_mov_b32 s26, 3670016
    s_mov_b32 s27, 0x20000
    s_mov_b32 s30, 1605632
    s_mov_b32 s31, 0x20000
    s_mov_b32 s34, 1605632
    s_mov_b32 s35, 0x20000
    s_mov_b32 s38, 0x10000000
    s_mov_b32 s39, 0x20000
    s_mov_b32 s42, 896
    s_mov_b32 s43, 0x20000
    s_mov_b32 s46, 3584
    s_mov_b32 s47, 0x20000
    s_mov_b32 s50, 896
    s_mov_b32 s51, 0x20000
    s_and_b32 s4, s2, 7                  ; g
    s_lshr_b32 s5, s2, 3                 ; s
    """)
    a(f"""
    v_mov_b32 v2, {SYNC}
    v_mov_b32 v4, 0
    v_mov_b32 v5, 0
    v_mov_b32 v6, 0
    v_mov_b32 v7, 0
    ds_write_b128 v2, v[4:7]
    v_lshlrev_b32 v3, 4, v0              ; lane*16
    s_waitcnt lgkmcnt(0)
    s_barrier
    s_cmp_lg_u32 s3, 4
    s_cbranch_scc1 L_compute
    """)
    stamp(1)
    a(f"""
    v_lshrrev_b32 v4, 3, v0              ; l>>3
    v_lshrrev_b32 v5, 4, v0              ; l>>4
    v_and_b32 v6, 3, v5
    v_lshlrev_b32 v6, 1, v6              ; ((l>>4)&3)<<1
    v_and_b32 v7, 7, v0
    v_xor_b32 v7, v7, v6
    v_lshlrev_b32 v7, 4, v7
    v_lshl_add_u32 v8, v4, 13, v7
    v_lshl_add_u32 v9, v4, 9, v7
    v_and_b32 v6, 1, v5
    v_lshlrev_b32 v6, 1, v6
    v_and_b32 v7, 3, v0
    v_xor_b32 v7, v7, v6
    v_lshlrev_b32 v7, 4, v7
    v_lshrrev_b32 v6, 2, v0
    v_mul_u32_u24 v10, 3584, v6
    v_add_u32 v10, v10, v7               ; w1 voffset
    ; K: (l>>5)*512 + ((l&31)^(l>>5))*16
    v_lshrrev_b32 v6, 5, v0
    v_and_b32 v7, 31, v0
    v_xor_b32 v7, v7, v6
    v_lshlrev_b32 v7, 4, v7
    v_lshl_add_u32 v11, v6, 9, v7
    v_mov_b32 v13, 0                     ; progress
    s_and_b32 s52, s5, 7                 ; cb
    s_lshr_b32 s53, s5, 3                ; rho
    s_lshl_b32 s54, s4, 10
    s_lshl_b32 s52, s52, 7
    s_add_u32 s54, s54, s52
    s_mul_i32 s53, s53, {112*8192}
    s_add_u32 s54, s54, s53
    s_mov_b32 s55, {WQL}
    s_mov_b32 s56, 0
    s_mov_b32 s57, {21 + cap - 1}
    """)
    def mark():
        l = a.label("L_mk")
        a(f"""s_waitcnt vmcnt({cap-1})
        s_cmp_lg_u32 s56, s57
        s_cbranch_scc1 {l}
        v_add_u32 v13, 1, v13
        s_add_u32 s57, s57, 32
        ds_write_b32 v2, v13
        {l}:
        s_add_u32 s56, s56, 1""")
    a("L_lq:")
    mark()
    a(f"""s_mov_b32 m0, s55
    s_add_u32 s55, s55, 1024
    buffer_load_dwordx4 v8, s[20:23], s54 offen nt lds
    s_add_u32 s54, s54, 65536
    s_cmp_lt_u32 s56, 14
    s_cbranch_scc1 L_lq
    s_lshr_b32 s52, s5, 2
    s_and_b32 s53, s5, 3
    s_mul_i32 s54, s4, 448
    s_lshl_b32 s52, s52, 6
    s_add_u32 s54, s54, s52
    s_mul_i32 s53, s53, {112*3584}
    s_add_u32 s54, s54, s53
    s_cmp_ge_u32 s5, 28
    s_cselect_b32 s54, 0x7000000, s54
    s_mov_b32 s55, {W1L}
    L_l1:""")
    mark()
    a(f"""s_mov_b32 m0, s55
    s_add_u32 s55, s55, 1024
    buffer_load_dwordx4 v10, s[28:31], s54 offen nt lds
    s_add_u32 s54, s54, {16*3584}
    s_cmp_lt_u32 s56, 21
    s_cbranch_scc1 L_l1
    s_lshl_b32 s58, s4, 22
    s_lshl_b32 s52, s5, 15
    s_add_u32 s58, s58, s52
    s_add_u32 s58, s58, 3145728
    """)
    if rot:
        a("s_mul_i32 s59, s5, 5\ns_mul_i32 s52, s4, 11\ns_add_u32 s59, s59, s52")
    else:
        a("s_mov_b32 s59, 0")
    a("L_lk:")
    mark()
    a(f"""s_and_b32 s52, s59, 31
    s_add_u32 s59, s59, 1
    s_and_b32 s53, s52, 7
    s_lshl_b32 s53, s53, 5
    v_xor_b32 v12, s53, v11
    s_lshl_b32 s52, s52, 10
    s_add_u32 m0, s52, {KL}
    s_add_u32 s54, s58, s52
    buffer_load_dwordx4 v12, s[12:15], s54 offen nt lds
    s_cmp_lt_u32 s56, 53
    s_cbranch_scc1 L_lk
    L_lv:""")
    mark()
    a(f"""s_and_b32 s52, s59, 31
    s_add_u32 s59, s59, 1
    s_lshr_b32 s53, s52, 2               ; n
    s_and_b32 s52, s52, 3                ; w
    s_lshl_b32 s54, s53, 12
    s_lshl_b32 s55, s52, 7
    s_add_u32 s54, s54, s55
    s_add_u32 s54, s54, s58
    s_lshl_b32 s53, s53, 10
    s_lshl_b32 s52, s52, 13
    s_add_u32 s52, s52, s53
    s_add_u32 m0, s52, {VL}
    s_cmp_lt_u32 s56, 85
    buffer_load_dwordx4 v9, s[16:19], s54 offen nt lds
    s_cbranch_scc1 L_lv
    s_lshl_b32 s54, s4, 9
    s_lshl_b32 s52, s5, 4
    s_add_u32 s54, s54, s52
    s_mul_i32 s54, s54, 896
    s_mov_b32 s55, {WCL}
    L_lo:""")
    mark()
    a(f"""s_mov_b32 m0, s55
    s_add_u32 s55, s55, 1024
    buffer_load_dwordx4 v3, s[24:27], s54 offen nt lds
    s_add_u32 s54, s54, 1024
    s_cmp_lt_u32 s56, 99
    s_cbranch_scc1 L_lo
    ; w2 base = (224g+8s)*896
    s_mul_i32 s54, s4, 224
    s_lshl_b32 s52, s5, 3
    s_add_u32 s54, s54, s52
    s_mul_i32 s54, s54, 896
    s_cmp_ge_u32 s5, 28
    s_cselect_b32 s54, 0x7000000, s54
    L_l2:""")
    mark()
    a(f"""s_mov_b32 m0, s55
    s_add_u32 s55, s55, 1024
    buffer_load_dwordx4 v3, s[32:35], s54 offen nt lds
    s_add_u32 s54, s54, 1024
    s_cmp_lt_u32 s56, 106
    s_cbranch_scc1 L_l2
    s_waitcnt vmcnt(0) lgkmcnt(0)
    """)
    if stamps:
        stamp(2)
        a("s_branch L_stamps")
    else:
        a("s_endpgm")
    a("L_compute:")
    stamp(1)
    a(f"""
    buffer_load_dwordx4 v[4:7], v3, s[8:11], 0 offen
    s_load_dword s61, s[36:37], 0                          ; epoch
    v_and_b32 v8, 15, v0                 ; j / lambda
    v_lshrrev_b32 v9, 4, v0              ; g4
    v_and_b32 v10, 3, v0                 ; c
    v_bfe_u32 v11, v0, 2, 2              ; r
    ; phi = ((g4&1)<<1) | (r>>1)
    v_and_b32 v12, 1, v9
    v_lshlrev_b32 v12, 1, v12
    v_lshrrev_b32 v13, 1, v11
    v_or_b32 v12, v12, v13               ; phi
    v_lshl_add_u32 v13, v9, 2, v11       ; 4g4+r
    v_lshlrev_b32 v14, 7, v13
    v_lshl_add_u32 v14, v12, 5, v14
    v_lshl_add_u32 v14, v10, 3, v14
    v_lshlrev_b32 v15, 6, v13
    v_and_b32 v16, 1, v9
    v_lshl_add_u32 v15, v16, 5, v15
    v_lshl_add_u32 v15, v10, 3, v15
    s_lshl_b32 s52, s3, 11
    s_add_u32 s52, s52, {XNL}
    v_add_u32 v16, s52, v3
    s_mov_b32 s62, 0xff
    s_mov_b32 s63, 0xffff0000
    s_mov_b32 s64, {f2u(1.0/448)}
    s_mov_b32 s66, -1
    s_mov_b32 s67, 0x00ffffff
    """)
    a(f"""
    s_mul_i32 s53, s4, 224
    s_lshl_b32 s54, s5, 3
    s_add_u32 s53, s53, s54
    s_lshl_b32 s53, s53, 1               ; f0*2
    s_cmp_ge_u32 s5, 28
    s_cselect_b32 s53, 0x7000000, s53
    v_and_b32 v17, 1, v0
    v_lshlrev_b32 v17, 3, v17
    buffer_load_dwordx2 v[18:19], v17, s[44:47], s53 offen   ; b1 quad
    v_lshlrev_b32 v20, 1, v9
    v_and_b32 v20, 2, v20
    v_lshrrev_b32 v21, 1, v9
    v_or_b32 v20, v20, v21               ; colmap
    v_lshlrev_b32 v20, 1, v20            ; *2 bytes
    s_lshl_b32 s54, s2, 3                ; n*8 bytes
    buffer_load_ushort v21, v20, s[8:11], s54 offen          ; x[col]
    buffer_load_ushort v22, v20, s[48:51], s54 offen         ; b2[col]
    """)
    def allreduce(x, t, op="v_add_f32"):
        a(f"""s_nop 1
        {op}_dpp {x}, {x}, {x} quad_perm:[1,0,3,2] row_mask:0xf bank_mask:0xf
        s_nop 1
        {op}_dpp {x}, {x}, {x} quad_perm:[2,3,0,1] row_mask:0xf bank_mask:0xf
        s_nop 1
        {op}_dpp {x}, {x}, {x} row_ror:4 row_mask:0xf bank_mask:0xf
        s_nop 1
        {op}_dpp {x}, {x}, {x} row_ror:8 row_mask:0xf bank_mask:0xf
        v_mov_b32 {t}, {x}
        s_nop 1
        v_permlane16_swap_b32 {x}, {t}
        {op} {x}, {x}, {t}
        v_mov_b32 {t}, {x}
        s_nop 1
        v_permlane32_swap_b32 {x}, {t}
        {op} {x}, {x}, {t}""")
    def layernorm(P):
        F = [f"v{24+i}" for i in range(8)]
        for i in range(4):
            a(f"v_lshlrev_b32 {F[2*i]}, 16, {P[i]}\nv_and_b32 {F[2*i+1]}, s63, {P[i]}")
        a(f"""v_add_f32 v32, {F[0]}, {F[1]}
        v_add_f32 v33, {F[2]}, {F[3]}
        v_add_f32 v34, {F[4]}, {F[5]}
        v_add_f32 v35, {F[6]}, {F[7]}
        v_add_f32 v32, v32, v33
        v_add_f32 v34, v34, v35
        v_add_f32 v32, v32, v34""")
        allreduce("v32", "v33")
        a(f"""v_mul_f32 v32, s64, v32          ; mean (f32)
        v_mov_b32 v34, 0
        v_cvt_pk_bf16_f32 v33, v32, v32
        v_and_b32 v33, s63, v33
        s_mov_b64 exec, s[66:67]""")
        for i in range(8):
            a(f"v_sub_f32 v35, {F[i]}, v32\nv_fmac_f32 v34, v35, v35")
        a("s_mov_b64 exec, -1")
        allreduce("v34", "v35")
        a(f"""v_mul_f32 v34, s64, v34          ; var
        v_cvt_pk_bf16_f32 v34, v34, v34
        v_and_b32 v34, s63, v34
        v_add_f32 v34, {f2u(1e-5)}, v34
        v_cvt_pk_bf16_f32 v34, v34, v34
        v_and_b32 v34, s63, v34
        v_sqrt_f32 v34, v34
        s_nop 0
        v_cvt_pk_bf16_f32 v34, v34, v34
        v_and_b32 v34, s63, v34              ; den
        v_rcp_f32 v35, v34""")
        for i in range(4):
            a(f"""v_sub_f32 {F[2*i]}, {F[2*i]}, v33
            v_sub_f32 {F[2*i+1]}, {F[2*i+1]}, v33
            v_cvt_pk_bf16_f32 v36, {F[2*i]}, {F[2*i+1]}
            v_lshlrev_b32 {F[2*i]}, 16, v36
            v_and_b32 {F[2*i+1]}, s63, v36
            v_mul_f32 v36, {F[2*i]}, v35
            v_mul_f32 v37, {F[2*i+1]}, v35
            v_fma_f32 v38, -v36, v34, {F[2*i]}
            v_fma_f32 v39, -v37, v34, {F[2*i+1]}
            v_fmac_f32 v36, v38, v35
            v_fmac_f32 v37, v39, v35
            v_cvt_pk_bf16_f32 {P[i]}, v36, v37""")
        a("s_mov_b64 exec, s[66:67]\ns_not_b64 exec, exec")
        for i in range(4): a(f"v_mov_b32 {P[i]}, 0")
        a("s_mov_b64 exec, -1")
    a("s_waitcnt vmcnt(3)")
    stamp(2)
    P = ["v4", "v5", "v6", "v7"]
    layernorm(P)
    a("ds_write_b128 v16, v[4:7]")
    stamp(3)
    def lds_wait(off, target, sleep=True):
        l = a.label("L_lw")
        a(f"""{l}:
        ds_read_b32 v40, v2 offset:{off}
        s_waitcnt lgkmcnt(0)
        v_readfirstlane_b32 s52, v40
        s_cmp_ge_u32 s52, {target}
        s_cbranch_scc1 {l}_ok
        {'s_sleep 1' if sleep else ''}
        s_branch {l}
        {l}_ok:""")
    def lds_arrive(off):
        a(f"""s_mov_b64 exec, 1
        v_mov_b32 v40, 1
        ds_add_u32 v2, v40 offset:{off}
        s_mov_b64 exec, -1""")
    a(f"""
    s_lshr_b32 s53, s5, 3
    s_mul_i32 s53, s53, 224
    s_add_u32 s53, s53, s52
    v_lshlrev_b32 v41, 3, v9
    v_add_u32 v41, s53, v41
    ds_read2_b64 v[44:47], v41 offset0:0 offset1:4
    ds_read2_b64 v[48:51], v41 offset0:8 offset1:12
    ds_read2_b64 v[52:55], v41 offset0:16 offset1:20
    ds_read_b64 v[56:57], v41 offset:192
    s_lshl_b32 s53, s3, 5
    v_xor_b32 v42, s53, v14
    s_add_u32 s61, s61, 1
    """)
    a.lines.pop()
    lds_wait(0, 1)
    stamp(4)
    a("s_add_u32 s61, s61, 1\ns_and_b32 s60, s61, 0xff\nv_mov_b32 v43, s60")
    for t in range(3):
        a(f"ds_read_b64_tr_b16 v[{60+4*t}:{61+4*t}], v42 offset:{WQL + t*4096}\nds_read_b64_tr_b16 v[{62+4*t}:{63+4*t}], v42 offset:{WQL + t*4096 + 2048}")
    a(f"ds_read_b64_tr_b16 v[72:73], v42 offset:{WQL + 3*4096}")
    a(f"""
    s_lshl_b32 s53, s4, 13
    s_lshr_b32 s54, s5, 3
    s_lshl_b32 s54, s54, 11
    s_add_u32 s53, s53, s54
    s_and_b32 s54, s5, 7
    s_lshl_b32 s54, s54, 8
    s_add_u32 s53, s53, s54
    s_lshl_b32 s54, s3, 6
    s_add_u32 s53, s53, s54
    s_add_u32 s53, s53, {QG}
    v_lshlrev_b32 v87, 4, v9             ; g4*16
    v_mov_b32 v58, 0
    v_mov_b32 v59, 0
    v_mov_b32 v74, 0
    v_mov_b32 v75, 0
    s_waitcnt lgkmcnt(5)
    v_mfma_f32_16x16x32_bf16 v[76:79], v[60:63], v[44:47], 0
    s_waitcnt lgkmcnt(3)
    v_mfma_f32_16x16x32_bf16 v[76:79], v[64:67], v[48:51], v[76:79]
    s_waitcnt lgkmcnt(1)
    v_mfma_f32_16x16x32_bf16 v[76:79], v[68:71], v[52:55], v[76:79]
    s_waitcnt lgkmcnt(0)
    v_mfma_f32_16x16x32_bf16 v[76:79], v[72:75], v[56:59], v[76:79]
    s_mov_b32 s54, 0x00010001
    s_mov_b32 s55, 0x00010001
    s_nop 7
    v_bfi_b32 v76, s62, v43, v76
    v_bfi_b32 v77, s62, v43, v77
    v_bfi_b32 v78, s62, v43, v78
    v_bfi_b32 v79, s62, v43, v79
    s_mov_b64 exec, s[54:55]
    buffer_store_dwordx4 v[76:79], v87, s[36:39], s53 offen sc1
    s_mov_b64 exec, -1
    """)
    stamp(5)
    a(f"""
    s_cmp_lt_u32 s3, 2
    s_cbranch_scc1 L_nomlp
    s_cmp_ge_u32 s5, 28
    s_cbranch_scc1 L_nomlp
    """)
    layernorm(P)
    a(f"""
    ds_write_b128 v16, v[4:7] offset:1024
    s_and_b32 s53, s5, 3
    s_mul_i32 s53, s53, 224
    s_add_u32 s53, s53, s52
    """)
    a.lines.pop();
    a(f"""
    s_lshl_b32 s52, s3, 11
    s_add_u32 s53, s53, s52
    s_add_u32 s53, s53, {XNL + 1024}
    v_lshlrev_b32 v41, 3, v9
    v_add_u32 v41, s53, v41
    ds_read2_b64 v[44:47], v41 offset0:0 offset1:4
    ds_read2_b64 v[48:51], v41 offset0:8 offset1:12
    ds_read2_b64 v[52:55], v41 offset0:16 offset1:20
    ds_read_b64 v[56:57], v41 offset:192
    s_and_b32 s53, s3, 1
    s_lshl_b32 s53, s53, 5
    v_xor_b32 v42, s53, v15
    """)
    for t in range(3):
        a(f"ds_read_b64_tr_b16 v[{60+4*t}:{61+4*t}], v42 offset:{W1L + t*2048}\nds_read_b64_tr_b16 v[{62+4*t}:{63+4*t}], v42 offset:{W1L + t*2048 + 1024}")
    a(f"ds_read_b64_tr_b16 v[72:73], v42 offset:{W1L + 3*2048}")
    a(f"""
    s_lshl_b32 s53, s4, 12
    s_and_b32 s54, s5, 3
    s_lshl_b32 s54, s54, 10
    s_add_u32 s53, s53, s54
    s_lshr_b32 s54, s5, 2
    s_lshl_b32 s54, s54, 7
    s_add_u32 s53, s53, s54
    s_and_b32 s54, s3, 1
    s_lshl_b32 s54, s54, 6
    s_add_u32 s53, s53, s54
    s_add_u32 s53, s53, {HG}
    s_waitcnt lgkmcnt(5)
    v_mfma_f32_16x16x32_bf16 v[80:83], v[60:63], v[44:47], 0
    s_waitcnt lgkmcnt(3)
    v_mfma_f32_16x16x32_bf16 v[80:83], v[64:67], v[48:51], v[80:83]
    s_waitcnt lgkmcnt(1)
    v_mfma_f32_16x16x32_bf16 v[80:83], v[68:71], v[52:55], v[80:83]
    s_waitcnt lgkmcnt(0)
    v_mfma_f32_16x16x32_bf16 v[80:83], v[72:75], v[56:59], v[80:83]
    s_mov_b32 s54, 0x00010001
    s_mov_b32 s55, 0x00010001
    s_nop 7
    v_bfi_b32 v80, s62, v43, v80
    v_bfi_b32 v81, s62, v43, v81
    v_bfi_b32 v82, s62, v43, v82
    v_bfi_b32 v83, s62, v43, v83
    s_mov_b64 exec, s[54:55]
    buffer_store_dwordx4 v[80:83], v87, s[36:39], s53 offen sc1
    s_mov_b64 exec, -1
    L_nomlp:
    """)
    def tagcheck(regs, fail):
        a(f"v_xor_b32 v44, {regs[0]}, v43")
        rest = regs[1:]
        while rest:
            if len(rest) >= 2:
                a(f"v_xor_b32 v45, {rest[0]}, v43\nv_xor_b32 v46, {rest[1]}, v43\nv_or3_b32 v44, v44, v45, v46"); rest = rest[2:]
            else:
                a(f"v_xor_b32 v45, {rest[0]}, v43\nv_or_b32 v44, v44, v45"); rest = rest[1:]
        a(f"""v_and_b32 v44, s62, v44
        v_cmp_ne_u32 vcc, 0, v44
        s_add_u32 s59, s59, 1
        s_cmp_gt_u32 s59, {SPIN_MAX}
        s_cbranch_scc1 {fail}_ok
        s_cmp_lg_u64 vcc, 0
        s_cbranch_scc1 {fail}
        {fail}_ok:""")
    a(f"""
    s_mov_b32 s59, 0
    s_lshl_b32 s53, s4, 13
    s_lshl_b32 s54, s3, 9
    s_add_u32 s53, s53, s54
    s_add_u32 s53, s53, {QG}
    s_add_u32 s54, s53, 4096
    v_lshlrev_b32 v59, 3, v0             ; lane*8
    L_qpoll:
    buffer_load_dwordx2 v[60:61], v59, s[36:39], s53 offen sc1
    buffer_load_dwordx2 v[62:63], v59, s[36:39], s53 offen offset:2048 sc1
    buffer_load_dwordx2 v[64:65], v59, s[36:39], s54 offen sc1
    buffer_load_dwordx2 v[66:67], v59, s[36:39], s54 offen offset:2048 sc1
    s_waitcnt vmcnt(0)
    """)
    tagcheck([f"v{60+i}" for i in range(8)], "L_qpoll")
    stamp(6)
    a(f"""
    v_add_f32 v60, v60, v62
    v_add_f32 v61, v61, v63
    v_add_f32 v64, v64, v66
    v_add_f32 v65, v65, v67
    v_add_f32 v60, v60, v64
    v_add_f32 v61, v61, v65
    v_cvt_pk_bf16_f32 v60, v60, v61
    s_lshl_b32 s53, s3, 8
    v_lshlrev_b32 v61, 2, v0
    v_add_u32 v61, s53, v61
    ds_write_b32 v61, v60 offset:{QL}
    """)
    lds_arrive(4)
    a(f"""
    v_and_b32 v60, 3, v8
    v_xor_b32 v60, v60, v9
    v_lshlrev_b32 v60, 4, v60
    v_and_b32 v61, 12, v8
    v_lshl_add_u32 v60, v61, 4, v60
    v_lshl_add_u32 v60, v8, 9, v60
    s_lshl_b32 s53, s3, 13
    s_add_u32 s53, s53, {KL}
    v_add_u32 v60, s53, v60
    v_xor_b32 v61, 64, v60
    v_xor_b32 v62, 0x80, v60
    v_xor_b32 v63, 0xc0, v60
    v_and_b32 v64, 1, v8
    v_lshlrev_b32 v64, 9, v64
    v_lshl_add_u32 v64, v9, 4, v64
    """)
    lds_wait(0, 2)
    for t in range(8):
        a(f"ds_read_b128 v[{96+4*t}:{99+4*t}], v{60+(t&3)} offset:{(t>>2)*256}")
    lds_wait(4, 4, sleep=False)
    stamp(7)
    for t in range(8):
        a(f"ds_read_b128 v[{128+4*t}:{131+4*t}], v64 offset:{QL + t*64}")
    for t in range(8):
        a(f"s_waitcnt lgkmcnt({7-t})")
        c = "0" if t == 0 else "v[76:79]"
        a(f"v_mfma_f32_16x16x32_bf16 v[76:79], v[{96+4*t}:{99+4*t}], v[{128+4*t}:{131+4*t}], {c}")
    a(f"""
    v_and_b32 v65, 1, v8
    v_lshlrev_b32 v65, 7, v65
    v_lshl_add_u32 v65, v9, 4, v65
    s_lshr_b32 s53, s3, 1
    s_lshl_b32 s53, s53, 6
    s_and_b32 s54, s3, 1
    s_lshl_b32 s54, s54, 3
    s_add_u32 s53, s53, s54
    v_add_u32 v66, s53, v65
    s_mov_b32 s54, 0x00030003
    s_mov_b32 s55, 0x00030003
    s_nop 1
    v_cvt_pk_bf16_f32 v68, v76, v77
    v_cvt_pk_bf16_f32 v69, v78, v79
    s_mov_b64 exec, s[54:55]
    ds_write_b64 v66, v[68:69] offset:{SL}
    s_mov_b64 exec, -1
    """)
    lds_arrive(8)
    lds_wait(8, 4, sleep=False)
    a(f"""
    ds_read_b128 v[68:71], v65 offset:{SL}
    ds_read_b128 v[72:75], v65 offset:{SL+64}
    s_mov_b32 s65, {f2u(LOG2E/16)}
    s_waitcnt lgkmcnt(0)
    """)
    E = [f"v{96+i}" for i in range(16)]
    for i in range(8):
        a(f"v_lshlrev_b32 {E[2*i]}, 16, v{68+i}\nv_and_b32 {E[2*i+1]}, s63, v{68+i}")
    a(f"""v_max3_f32 v76, {E[0]}, {E[1]}, {E[2]}
    v_max3_f32 v77, {E[3]}, {E[4]}, {E[5]}
    v_max3_f32 v78, {E[6]}, {E[7]}, {E[8]}
    v_max3_f32 v79, {E[9]}, {E[10]}, {E[11]}
    v_max3_f32 v76, v76, {E[12]}, {E[13]}
    v_max3_f32 v77, v77, {E[14]}, {E[15]}
    v_max3_f32 v76, v76, v77, v78
    v_max_f32 v76, v76, v79
    v_mov_b32 v77, v76
    s_nop 1
    v_permlane16_swap_b32 v76, v77
    v_max_f32 v76, v76, v77
    v_mov_b32 v77, v76
    s_nop 1
    v_permlane32_swap_b32 v76, v77
    v_max_f32 v76, v76, v77
    """)
    for i in range(16):
        a(f"v_sub_f32 {E[i]}, {E[i]}, v76\nv_mul_f32 {E[i]}, s65, {E[i]}\nv_exp_f32 {E[i]}, {E[i]}")
    a("s_nop 0")
    a(f"v_add_f32 v77, {E[0]}, {E[1]}\nv_add_f32 v78, {E[2]}, {E[3]}")
    for i in range(4, 16, 2):
        a(f"v_add_f32 v77, v77, {E[i]}\nv_add_f32 v78, v78, {E[i+1]}")
    a(f"""v_add_f32 v77, v77, v78
    v_mov_b32 v78, v77
    s_nop 1
    v_permlane16_swap_b32 v77, v78
    v_add_f32 v77, v77, v78
    v_mov_b32 v78, v77
    s_nop 1
    v_permlane32_swap_b32 v77, v78
    v_add_f32 v77, v77, v78              ; l
    """)
    for i in range(8):
        a(f"v_cvt_pk_bf16_f32 v{68+i}, {E[2*i]}, {E[2*i+1]}")
    a(f"""
    s_cmp_lg_u32 s3, 0
    s_cbranch_scc1 L_noml
    v_mov_b32 v78, s61
    v_mov_b32 v79, s61
    s_lshl_b32 s53, s4, 10
    s_lshl_b32 s54, s5, 4
    s_add_u32 s53, s53, s54
    s_add_u32 s53, s53, {MLG}
    v_lshlrev_b32 v80, 9, v0
    s_mov_b64 exec, 3
    buffer_store_dwordx4 v[76:79], v80, s[36:39], s53 offen sc1
    s_mov_b64 exec, -1
    L_noml:
    """)
    a("v_lshrrev_b32 v80, 1, v8")
    for T in range(4):
        a(f"v_cmp_eq_u32 vcc, {T}, v80\ns_nop 1")
        for i in range(8):
            a(f"v_cndmask_b32 v{128+8*T+i}, 0, v{68+i}, vcc")
    a(f"""
    s_lshl_b32 s53, s3, 13
    s_add_u32 s53, s53, {VL}
    v_add_u32 v81, s53, v14
    v_xor_b32 v82, 32, v81
    v_xor_b32 v83, 64, v81
    v_xor_b32 v84, 0x60, v81
    v_and_b32 v85, 1, v8
    v_lshlrev_b32 v85, 4, v85
    v_add_u32 v85, v85, v80              ; head*16 + T
    v_lshlrev_b32 v85, 11, v85
    v_lshl_add_u32 v85, v9, 4, v85
    s_lshl_b32 s53, s4, 16
    s_lshl_b32 s54, s3, 13
    s_add_u32 s53, s53, s54
    s_lshl_b32 s54, s5, 6
    s_add_u32 s53, s53, s54
    s_add_u32 s58, s53, {OG}
    """)
    stamp(8)
    lds_wait(0, 3, sleep=False)
    stamp(9)
    for T in range(4):
        for hf in range(2):
            b = 96 + 8*T + 4*hf
            a(f"ds_read_b64_tr_b16 v[{b}:{b+1}], v{81+T} offset:{hf*4096}\nds_read_b64_tr_b16 v[{b+2}:{b+3}], v{81+T} offset:{hf*4096 + 2048}")
    k = 0
    for T in range(4):
        for hf in range(2):
            b = 96 + 8*T + 4*hf; pb = 128 + 8*T + 4*hf
            a(f"s_waitcnt lgkmcnt({14-2*k})")
            c = "0" if k == 0 else "v[76:79]"
            a(f"v_mfma_f32_16x16x32_bf16 v[76:79], v[{b}:{b+3}], v[{pb}:{pb+3}], {c}")
            k += 1
    a(f"""
    s_mov_b32 s54, 0x00ff00ff
    s_mov_b32 s55, 0x00ff00ff
    s_nop 6
    v_bfi_b32 v76, s62, v43, v76
    v_bfi_b32 v77, s62, v43, v77
    v_bfi_b32 v78, s62, v43, v78
    v_bfi_b32 v79, s62, v43, v79
    s_mov_b64 exec, s[54:55]
    buffer_store_dwordx4 v[76:79], v85, s[36:39], s58 offen sc1
    s_mov_b64 exec, -1
    """)
    stamp(10)
    a(f"""
    s_cmp_lg_u32 s3, 3
    s_cbranch_scc1 L_noh
    v_mov_b32 v68, 0
    v_mov_b32 v69, 0
    s_cmp_ge_u32 s5, 28
    s_cbranch_scc1 L_hw
    v_bfe_u32 v80, v0, 1, 2
    v_lshlrev_b32 v80, 10, v80
    v_and_b32 v81, 1, v0
    v_lshl_add_u32 v80, v81, 4, v80
    s_lshl_b32 s53, s4, 12
    s_lshl_b32 s54, s5, 5
    s_add_u32 s53, s53, s54
    s_add_u32 s53, s53, {HG}
    s_mov_b32 s59, 0
    L_hpoll:
    buffer_load_dwordx4 v[60:63], v80, s[36:39], s53 offen sc1
    s_waitcnt vmcnt(0)
    """)
    tagcheck(["v60", "v61", "v62", "v63"], "L_hpoll")
    for i in range(4):
        a(f"v_add_f32_dpp v{60+i}, v{60+i}, v{60+i} quad_perm:[2,3,0,1] row_mask:0xf bank_mask:0xf")
    a("s_nop 0")
    for i in range(4):
        a(f"v_add_f32_dpp v{60+i}, v{60+i}, v{60+i} row_ror:4 row_mask:0xf bank_mask:0xf")
    C1 = 0.7978845608028654; C2 = 0.044715
    a(f"""
    v_cvt_pk_bf16_f32 v64, v60, v61
    v_cvt_pk_bf16_f32 v65, v62, v63
    v_lshlrev_b32 v60, 16, v64
    v_and_b32 v61, s63, v64
    v_lshlrev_b32 v62, 16, v65
    v_and_b32 v63, s63, v65
    v_lshlrev_b32 v64, 16, v18
    v_and_b32 v65, s63, v18
    v_lshlrev_b32 v66, 16, v19
    v_and_b32 v67, s63, v19
    v_add_f32 v60, v60, v64
    v_add_f32 v61, v61, v65
    v_add_f32 v62, v62, v66
    v_add_f32 v63, v63, v67
    v_cvt_pk_bf16_f32 v64, v60, v61
    v_cvt_pk_bf16_f32 v65, v62, v63
    v_lshlrev_b32 v60, 16, v64
    v_and_b32 v61, s63, v64
    v_lshlrev_b32 v62, 16, v65
    v_and_b32 v63, s63, v65
    s_mov_b32 s53, {f2u(C2)}
    s_mov_b32 s54, {f2u(-2.0*C1*LOG2E)}
    """)
    for i in range(4):
        t = f"v{60+i}"; u = f"v{64+i}"
        a(f"""v_mul_f32 {u}, {t}, {t}
        v_mul_f32 {u}, s53, {u}
        v_fma_f32 {u}, {u}, {t}, {t}
        v_mul_f32 {u}, s54, {u}
        v_exp_f32 {u}, {u}
        s_nop 0
        v_add_f32 {u}, 1.0, {u}
        v_rcp_f32 {u}, {u}
        s_nop 0
        v_mul_f32 {t}, {t}, {u}""")
    a(f"""
    v_cvt_pk_bf16_f32 v68, v60, v61
    v_cvt_pk_bf16_f32 v69, v62, v63
    v_cmp_gt_u32 vcc, 2, v0
    s_nop 1
    v_cndmask_b32 v68, 0, v68, vcc
    v_cndmask_b32 v69, 0, v69, vcc
    L_hw:
    v_lshlrev_b32 v80, 3, v0
    s_mov_b64 exec, 15
    ds_write_b64 v80, v[68:69] offset:{OL+32}
    s_mov_b64 exec, -1
    L_noh:
    """)
    a(f"""
    v_lshrrev_b32 v80, 1, v0
    v_lshlrev_b32 v81, 4, v80            ; sigma*16
    s_lshl_b32 s53, s4, 10
    s_lshr_b32 s54, s5, 4
    s_lshl_b32 s54, s54, 9
    s_add_u32 s53, s53, s54
    s_add_u32 s53, s53, {MLG}
    s_mov_b32 s59, 0
    L_mlpoll:
    buffer_load_dwordx4 v[60:63], v81, s[36:39], s53 offen sc1
    s_waitcnt vmcnt(0)
    v_xor_b32 v44, s61, v62
    v_xor_b32 v45, s61, v63
    v_or_b32 v44, v44, v45
    v_cmp_ne_u32 vcc, 0, v44
    s_add_u32 s59, s59, 1
    s_cmp_gt_u32 s59, {SPIN_MAX}
    s_cbranch_scc1 L_mlpoll_ok
    s_cmp_lg_u64 vcc, 0
    s_cbranch_scc1 L_mlpoll
    L_mlpoll_ok:
    v_mov_b32 v62, v60
    """)
    allreduce("v62", "v63", "v_max_f32")
    a(f"""
    v_sub_f32 v60, v60, v62
    v_mul_f32 v60, s65, v60
    v_exp_f32 v60, v60                   ; e_sigma
    s_nop 0
    v_mul_f32 v61, v61, v60              ; e*l
    """)
    allreduce("v61", "v63")
    a(f"""
    v_mul_f32 v61, 0.5, v61
    v_rcp_f32 v62, v61
    s_nop 0
    v_fma_f32 v63, -v61, v62, 1.0
    v_fmac_f32 v62, v63, v62
    v_mul_f32 v86, v60, v62              ; coefficient
    v_min_u32 v80, 2, v9
    v_lshl_add_u32 v80, v80, 3, v11
    v_mul_u32_u24 v80, 896, v80
    v_lshl_add_u32 v80, v10, 3, v80
    s_mul_i32 s53, s3, 224
    v_add_u32 v80, s53, v80
    s_waitcnt lgkmcnt(0)
    s_barrier
    """)
    stamp(11)
    for T in range(7):
        b = 96 + 4*T
        a(f"ds_read_b64_tr_b16 v[{b}:{b+1}], v80 offset:{WCL + T*32}\nds_read_b64_tr_b16 v[{b+2}:{b+3}], v80 offset:{WCL + T*32 + 3584}")
    for T in range(7):
        a(f"v_cmp_eq_u32 vcc, {T}, v8\ns_nop 1\nv_cndmask_b32 v{88+T}, 0, -1, vcc")
    a(f"""
    v_lshrrev_b32 v81, 1, v0
    v_lshlrev_b32 v81, 6, v81
    v_and_b32 v82, 1, v0
    v_lshl_add_u32 v81, v82, 3, v81
    s_lshl_b32 s53, s4, 16
    s_lshl_b32 s54, s5, 11
    s_add_u32 s53, s53, s54
    s_lshl_b32 s54, s3, 4
    s_add_u32 s53, s53, s54
    s_add_u32 s53, s53, {OG}
    v_and_b32 v83, 1, v9
    v_lshl_add_u32 v83, v82, 1, v83
    v_lshlrev_b32 v83, 1, v83
    s_lshl_b32 s54, s3, 3
    v_add_u32 v83, s54, v83
    v_lshlrev_b32 v84, 4, v9
    v_lshl_add_u32 v85, v8, 2, v9
    v_lshlrev_b32 v85, 12, v85
    s_mul_i32 s58, s3, {28*4096}
    s_lshl_b32 s54, s2, 4
    s_add_u32 s58, s58, s54
    s_add_u32 s58, s58, {P3}
    s_mov_b32 s59, 0
    L_opoll:
    buffer_load_dwordx2 v[60:61], v81, s[36:39], s53 offen sc1
    s_waitcnt vmcnt(0)
    """)
    tagcheck(["v60", "v61"], "L_opoll")
    stamp(12)
    a(f"""
    v_mul_f32 v60, v60, v86
    v_mul_f32 v61, v61, v86
    s_nop 1
    v_permlane16_swap_b32 v60, v61
    v_add_f32 v60, v60, v61
    v_mov_b32 v61, v60
    s_nop 1
    v_permlane32_swap_b32 v60, v61
    v_add_f32 v60, v60, v61
    s_nop 1
    v_add_f32_dpp v60, v60, v60 quad_perm:[2,3,0,1] row_mask:0xf bank_mask:0xf
    s_nop 1
    v_add_f32_dpp v60, v60, v60 row_ror:4 row_mask:0xf bank_mask:0xf
    s_nop 1
    v_add_f32_dpp v60, v60, v60 row_ror:8 row_mask:0xf bank_mask:0xf
    s_mov_b32 s54, 0x00030003
    s_mov_b32 s55, 0
    v_cvt_pk_bf16_f32 v60, v60, v60
    s_mov_b64 exec, s[54:55]
    ds_write_b16 v83, v60 offset:{OL}
    s_mov_b64 exec, -1
    s_waitcnt lgkmcnt(0)
    s_barrier
    ds_read_b128 v[60:63], v84 offset:{OL}
    s_waitcnt lgkmcnt(0)
    """)
    for T in range(7):
        bb = 128 + 4*T; b = 96 + 4*T
        for i in range(4):
            a(f"v_and_b32 v{bb+i}, v{60+i}, v{88+T}")
        if T > 0:
            pb = 128 + 4*(T-1); pa = 96 + 4*(T-1)
            c = "0" if T == 1 else "v[76:79]"
            a(f"v_mfma_f32_16x16x32_bf16 v[76:79], v[{pa}:{pa+3}], v[{pb}:{pb+3}], {c}")
    a(f"""s_nop 1
    v_mfma_f32_16x16x32_bf16 v[76:79], v[120:123], v[152:155], v[76:79]
    s_mov_b32 s54, 0x007f007f
    s_mov_b32 s55, 0x007f007f
    s_nop 6
    v_bfi_b32 v76, s62, v43, v76
    v_bfi_b32 v77, s62, v43, v77
    v_bfi_b32 v78, s62, v43, v78
    v_bfi_b32 v79, s62, v43, v79
    s_mov_b64 exec, s[54:55]
    buffer_store_dwordx4 v[76:79], v85, s[36:39], s58 offen sc1
    s_mov_b64 exec, -1
    """)
    stamp(13)
    fin = "L_stamps" if stamps else "L_end"
    a(f"""
    s_cmp_lg_u32 s3, 0
    s_cbranch_scc1 {fin}
    s_cmp_ge_u32 s2, 112
    s_cbranch_scc1 {fin}
    s_lshl_b32 s53, s2, 12
    s_add_u32 s53, s53, {P3}
    s_mov_b32 s59, 0
    v_lshlrev_b32 v21, 16, v21
    v_lshlrev_b32 v22, 16, v22
    v_add_f32 v21, v21, v22              ; x + b2
    L_ppoll:
    buffer_load_dwordx4 v[60:63], v3, s[36:39], s53 offen sc1
    buffer_load_dwordx4 v[64:67], v3, s[36:39], s53 offen offset:1024 sc1
    buffer_load_dwordx4 v[68:71], v3, s[36:39], s53 offen offset:2048 sc1
    buffer_load_dwordx4 v[72:75], v3, s[36:39], s53 offen offset:3072 sc1
    s_waitcnt vmcnt(0)
    """)
    tagcheck([f"v{60+i}" for i in range(16)], "L_ppoll")
    stamp(14)
    for i in range(4):
        a(f"v_add_f32 v{60+i}, v{60+i}, v{64+i}\nv_add_f32 v{68+i}, v{68+i}, v{72+i}")
    for i in range(4):
        a(f"v_add_f32 v{60+i}, v{60+i}, v{68+i}")
    a(f"""
    s_nop 1
    v_permlane32_swap_b32 v60, v61
    v_permlane32_swap_b32 v62, v63
    v_add_f32 v60, v60, v61
    v_add_f32 v62, v62, v63
    s_nop 1
    v_permlane16_swap_b32 v60, v62
    v_add_f32 v60, v60, v62              ; rows: a, c, b, d
    s_nop 1
    v_add_f32_dpp v60, v60, v60 quad_perm:[1,0,3,2] row_mask:0xf bank_mask:0xf
    s_nop 1
    v_add_f32_dpp v60, v60, v60 quad_perm:[2,3,0,1] row_mask:0xf bank_mask:0xf
    s_nop 1
    v_add_f32_dpp v60, v60, v60 row_ror:4 row_mask:0xf bank_mask:0xf
    s_nop 1
    v_add_f32_dpp v60, v60, v60 row_ror:8 row_mask:0xf bank_mask:0xf
    v_add_f32 v60, v60, v21
    v_cvt_pk_bf16_f32 v60, v60, v60
    s_mov_b32 s54, 0x00010001
    s_mov_b32 s55, 0x00010001
    s_lshl_b32 s53, s2, 3
    s_mov_b64 exec, s[54:55]
    buffer_store_short v60, v20, s[40:43], s53 offen
    s_mov_b64 exec, -1
    s_cmp_lg_u32 s2, 0
    s_cbranch_scc1 {fin}
    v_mov_b32 v60, s61
    v_mov_b32 v61, 0
    s_mov_b64 exec, 1
    buffer_store_dword v60, v61, s[36:39], 0 offen
    s_mov_b64 exec, -1
    """)
    if stamps:
        a("L_stamps:")
        stamp(15)
        a(f"""s_waitcnt lgkmcnt(0)
        s_mul_i32 s53, s2, {5*128}
        s_lshl_b32 s54, s3, 7
        s_add_u32 s53, s53, s54
        s_add_u32 s53, s53, {STAMP}
        v_mov_b32 v10, 0""")
        for i in range(16):
            a(f"v_mov_b32 v12, s{70+2*i}\nv_mov_b32 v13, s{71+2*i}\nbuffer_store_dwordx2 v[12:13], v10, s[36:39], s53 offen offset:{i*8}\ns_nop 1")
    a("L_end:\ns_endpgm")
    return wrap(a.text(), 256, 320, LDS_TOTAL, 160)

if __name__ == "__main__":
    open("k1.s", "w").write(gen())
    open("k1s.s", "w").write(gen(stamps=True))
```

```python
import sys, struct
from asmlib import *

SYNC = 0; OL = 64; SL = 128; QL = 512; XNL = 2048; WQL = 10240; WCL = 24576; W1L = 46080
KL = 53248; VL = 86016; LDS_TOTAL = 118784
QG = 0x1000; HG = 0x12000; MLG = 0x1A000; OG = 0x20000; P3 = 0x100000
DUAL = 0x200000
STAMP = 0x8000000
SPIN_MAX = 200000
SLOW_EVERY = 127
TMO = 64
LOG2E = 1.4426950408889634
def f2u(f): return struct.unpack("<I", struct.pack("<f", f))[0]

def gen(cap=16, stamps=False, final_waves=4, codepf=True, wqx=None, qsleep=12):
    a = Asm()
    def stamp(k):
        if stamps: a(f"s_memrealtime s[{70+2*k}:{71+2*k}]")
    a("s_cmp_ge_u32 s2, 256\ns_cbranch_scc1 L_end")
    stamp(0)
    a(f"""
    s_load_dwordx2 s[20:21], s[0:1], 24
    s_load_dwordx2 s[8:9], s[0:1], 0
    s_load_dwordx2 s[36:37], s[0:1], 96
    s_load_dwordx2 s[28:29], s[0:1], 48
    s_load_dwordx2 s[12:13], s[0:1], 8
    s_load_dwordx2 s[16:17], s[0:1], 16
    s_load_dwordx2 s[24:25], s[0:1], 32
    s_load_dwordx2 s[32:33], s[0:1], 64
    s_load_dwordx2 s[40:41], s[0:1], 80
    s_load_dwordx2 s[44:45], s[0:1], 56
    s_load_dwordx2 s[48:49], s[0:1], 72
    """)
    if codepf:
        a(f"""
    s_getpc_b64 s[6:7]
    L_pc:
    s_lshr_b32 s4, s2, 3
    s_mul_i32 s4, s4, 5
    v_lshrrev_b32 v1, 6, v0
    v_add_u32 v1, s4, v1
    v_and_b32 v1, 15, v1
    v_and_b32 v2, 63, v0
    v_lshlrev_b32 v2, 4, v2
    v_lshl_add_u32 v1, v1, 10, v2
    v_min_u32 v1, L_end-L_pc-16, v1
    global_load_dwordx4 v[164:167], v1, s[6:7]
    """)
    a(f"""
    v_lshrrev_b32 v1, 6, v0
    v_and_b32 v0, 63, v0                 ; lane
    v_mov_b32 v2, {SYNC}
    v_readfirstlane_b32 s3, v1
    v_mov_b32 v4, 0
    v_mov_b32 v5, 0
    v_mov_b32 v6, 0
    v_mov_b32 v7, 0
    ds_write_b128 v2, v[4:7]
    s_mov_b32 s10, 896
    s_mov_b32 s11, 0x20000
    s_mov_b32 s14, 0x2000000
    s_mov_b32 s15, 0x20000
    s_mov_b32 s18, 0x2000000
    s_mov_b32 s19, 0x20000
    s_mov_b32 s22, 3670016
    s_mov_b32 s23, 0x20000
    s_mov_b32 s26, 3670016
    s_mov_b32 s27, 0x20000
    s_mov_b32 s30, 1605632
    s_mov_b32 s31, 0x20000
    s_mov_b32 s34, 1605632
    s_mov_b32 s35, 0x20000
    s_mov_b32 s38, 0x10000000
    s_mov_b32 s39, 0x20000
    s_mov_b32 s42, 896
    s_mov_b32 s43, 0x20000
    s_mov_b32 s46, 3584
    s_mov_b32 s47, 0x20000
    s_mov_b32 s50, 896
    s_mov_b32 s51, 0x20000
    s_and_b32 s4, s2, 7                  ; g
    s_lshr_b32 s5, s2, 3                 ; s
    v_lshlrev_b32 v3, 4, v0              ; lane*16
    v_lshrrev_b32 v9, 4, v0              ; g4 = l>>4
    v_lshrrev_b32 v14, 3, v0             ; l>>3
    v_lshlrev_b32 v15, 1, v9             ; (l>>4)<<1   (l>>4 in 0..3)
    v_and_b32 v13, 7, v0
    v_xor_b32 v13, v13, v15
    v_lshlrev_b32 v13, 4, v13
    v_lshl_add_u32 v16, v14, 13, v13
    v_add_u32 v17, {65536-1024}, v16
    v_add_u32 v18, {2*(65536-1024)}, v16
    v_add_u32 v19, {3*(65536-1024)}, v16
    s_and_b32 s52, s5, 7                 ; cb
    s_lshr_b32 s53, s5, 3                ; rho
    s_lshl_b32 s54, s4, 10
    s_lshl_b32 s52, s52, 7
    s_add_u32 s54, s54, s52
    s_mul_i32 s53, s53, {112*8192}
    s_add_u32 s54, s54, s53
    s_mov_b32 m0, {WQL}
    s_waitcnt lgkmcnt(0)
    s_load_dword s61, s[36:37], 0                          ; epoch
    s_cmp_eq_u32 s3, 4
    s_cbranch_scc1 L_loader
    buffer_load_dwordx4 v[4:7], v3, s[8:11], 0 offen
    s_barrier
    s_branch L_compute
    L_loader:
    s_setprio 3
    """)
    stamp(1)
    cnt = [0]
    marks = [14, 21, 53, 85]
    def group(loads):
        n = len(loads)
        c = cap
        if wqx is not None and marks and marks[0] == 14 and cnt[0] >= 14 and cnt[0] + n - 14 > wqx:
            c = min(cap, cnt[0] - 14 + n)
        if cnt[0] + n > c:
            a(f"s_waitcnt vmcnt({c - n})")
            landed = cnt[0] - (c - n)
            while marks and landed >= marks[0]:
                marks.pop(0)
                a("ds_write_b32 v2, v12\nv_add_u32 v12, 1, v12")
        for l in loads: a(l)
        cnt[0] += n
    for gi in range(4):
        n = min(4, 14 - 4*gi)
        if gi: a(f"s_mov_b32 m0, {WQL + gi*4096}\ns_add_u32 s54, s54, {4*65536}")
        group([f"buffer_load_dwordx4 v{16+k}, s[20:23], s54 offen offset:{k*1024} nt lds" for k in range(n)])
        if gi == 0: a("s_barrier\nv_mov_b32 v12, 1")
        if gi == 3: a(f"""    ; final stage: tile tau = g + 8*(s>>2), quad = s&3 ; col = 16*tau + 4*quad + colmap(row)
    s_lshr_b32 s68, s5, 2
    s_lshl_b32 s68, s68, 3
    s_add_u32 s68, s68, s4               ; tau
    s_and_b32 s55, s5, 3
    s_lshl_b32 s69, s68, 2
    s_add_u32 s69, s69, s55
    v_lshlrev_b32 v50, 1, v9
    v_and_b32 v50, 2, v50
    v_lshrrev_b32 v51, 1, v9
    v_or_b32 v50, v50, v51               ; colmap
    v_lshlrev_b32 v50, 1, v50            ; *2 bytes
    s_lshl_b32 s55, s69, 3               ; n*8 bytes
    buffer_load_ushort v51, v50, s[8:11], s55 offen          ; x[col]
    buffer_load_ushort v52, v50, s[48:51], s55 offen         ; b2[col]
""")
    a(f"""
    v_and_b32 v6, 1, v9
    v_lshlrev_b32 v6, 1, v6
    v_and_b32 v8, 3, v0
    v_xor_b32 v8, v8, v6
    v_lshlrev_b32 v8, 4, v8
    v_lshrrev_b32 v6, 2, v0
    v_mul_u32_u24 v20, 3584, v6
    v_add_u32 v20, v20, v8               ; w1 voffset
    v_add_u32 v21, {57344-1024}, v20
    v_add_u32 v22, {2*(57344-1024)}, v20
    v_add_u32 v23, {3*(57344-1024)}, v20
    s_lshr_b32 s52, s5, 2
    s_and_b32 s53, s5, 3
    s_mul_i32 s54, s4, 448
    s_lshl_b32 s52, s52, 6
    s_add_u32 s54, s54, s52
    s_mul_i32 s53, s53, {112*3584}
    s_add_u32 s54, s54, s53
    s_cmp_ge_u32 s5, 28
    s_mov_b32 m0, {W1L}
    s_cselect_b32 s54, 0x7000000, s54
    """)
    for gi in range(2):
        n = min(4, 7 - 4*gi)
        if gi: a(f"s_mov_b32 m0, {W1L + gi*4096}\ns_add_u32 s54, s54, {4*57344}")
        group([f"buffer_load_dwordx4 v{20+k}, s[28:31], s54 offen offset:{k*1024} nt lds" for k in range(n)])
    a(f"""
    v_lshrrev_b32 v6, 5, v0
    v_and_b32 v8, 31, v0
    v_xor_b32 v8, v8, v6
    v_lshlrev_b32 v8, 4, v8
    v_lshl_add_u32 v24, v6, 9, v8
    """)
    for n in range(1, 8): a(f"v_xor_b32 v{24+n}, {n<<5}, v24")
    a(f"""
    s_lshl_b32 s58, s4, 22
    s_lshl_b32 s52, s5, 15
    s_add_u32 s58, s58, s52
    s_add_u32 s58, s58, 3145728
    s_add_u32 s59, s5, s4                ; rotation
    v_lshl_add_u32 v32, v14, 9, v13
    v_add_u32 v32, 4096, v32
    v_subrev_u32 v33, 896, v32
    v_subrev_u32 v34, {2*896}, v32
    v_subrev_u32 v35, {3*896}, v32
    """)
    for gi in range(4):
        a(f"""s_add_u32 s52, s59, {gi}
        s_and_b32 s52, s52, 3
        s_lshl_b32 s52, s52, 13
        s_add_u32 m0, s52, {KL}
        s_add_u32 s54, s58, s52""")
        group([f"buffer_load_dwordx4 v{24+k}, s[12:15], s54 offen offset:{k*1024} nt lds" for k in range(4)])
        a(f"s_add_u32 m0, s52, {KL + 4096}\ns_add_u32 s54, s54, 4096")
        group([f"buffer_load_dwordx4 v{28+k}, s[12:15], s54 offen offset:{k*1024} nt lds" for k in range(4)])
    a("s_sub_u32 s58, s58, 4096")
    for gi in range(8):
        a(f"""s_add_u32 s52, s59, {gi}
        s_and_b32 s52, s52, 7
        s_lshl_b32 s52, s52, 12
        s_add_u32 m0, s52, {VL}
        s_add_u32 s54, s58, s52""")
        group([f"buffer_load_dwordx4 v{32+k}, s[16:19], s54 offen offset:{k*1024} nt lds" for k in range(4)])
    a(f"""
    s_lshl_b32 s54, s4, 9
    s_lshl_b32 s52, s5, 4
    s_add_u32 s54, s54, s52
    s_mov_b32 m0, {WCL}
    s_mul_i32 s54, s54, 896
    """)
    for gi in range(4):
        n = min(4, 14 - 4*gi)
        if gi: a(f"s_mov_b32 m0, {WCL + gi*4096}\ns_add_u32 s54, s54, 4096")
        group([f"buffer_load_dwordx4 v3, s[24:27], s54 offen offset:{k*1024} nt lds" for k in range(n)])
    a(f"""
    s_mul_i32 s54, s4, 224
    s_lshl_b32 s52, s5, 3
    s_add_u32 s54, s54, s52
    s_mul_i32 s54, s54, 896
    s_cmp_ge_u32 s5, 28
    s_mov_b32 m0, {WCL + 14336}
    s_cselect_b32 s54, 0x7000000, s54
    """)
    for gi in range(2):
        n = min(4, 7 - 4*gi)
        if gi: a(f"s_mov_b32 m0, {WCL + 14336 + gi*4096}\ns_add_u32 s54, s54, 4096")
        group([f"buffer_load_dwordx4 v3, s[32:35], s54 offen offset:{k*1024} nt lds" for k in range(n)])
    while marks:
        m = marks.pop(0)
        a(f"s_waitcnt vmcnt({cnt[0] - m})\nds_write_b32 v2, v12\nv_add_u32 v12, 1, v12")
    a("s_waitcnt vmcnt(0)\nds_write_b32 v2, v12")
    stamp(2)
    a(f"""
    s_mov_b32 s62, 0xff
    s_waitcnt lgkmcnt(0)
    s_add_u32 s61, s61, 1
    s_and_b32 s60, s61, 0xff
    v_mov_b32 v43, s60
    s_setprio 0
    s_barrier
    s_branch L_final
    """)
    PR_WQ, PR_W1, PR_K, PR_V, PR_ALL = 1, 2, 3, 4, 5
    a("L_compute:")
    stamp(1)
    a(f"""
    v_and_b32 v8, 15, v0                 ; j / lambda
    v_and_b32 v10, 3, v0                 ; c
    v_bfe_u32 v11, v0, 2, 2              ; r
    v_and_b32 v12, 1, v9
    v_lshlrev_b32 v12, 1, v12
    v_lshrrev_b32 v13, 1, v11
    v_or_b32 v12, v12, v13               ; phi
    v_lshl_add_u32 v13, v9, 2, v11       ; 4g4+r
    v_lshlrev_b32 v14, 7, v13
    v_lshl_add_u32 v14, v12, 5, v14
    v_lshl_add_u32 v14, v10, 3, v14
    v_lshlrev_b32 v15, 6, v13
    v_and_b32 v16, 1, v9
    v_lshl_add_u32 v15, v16, 5, v15
    v_lshl_add_u32 v15, v10, 3, v15
    s_lshl_b32 s52, s3, 11
    s_add_u32 s52, s52, {XNL}
    v_add_u32 v16, s52, v3
    s_mov_b32 s6, 0
    v_mov_b32 v188, 0x7ff00000
    v_mov_b32 v194, 0x7ff00000
    v_mov_b32 v200, 0x7ff00000
    v_mov_b32 v206, 0x7ff00000
    s_mov_b32 s62, 0xff
    s_mov_b32 s63, 0xffff0000
    s_mov_b32 s64, {f2u(1.0/448)}
    s_mov_b32 s65, {f2u(LOG2E/16)}
    s_mov_b32 s66, -1
    s_mov_b32 s67, 0x00ffffff
    s_mul_i32 s53, s4, 224
    s_lshl_b32 s54, s5, 3
    s_add_u32 s53, s53, s54
    s_lshl_b32 s53, s53, 1               ; f0*2
    s_cmp_ge_u32 s5, 28
    s_cselect_b32 s53, 0x7000000, s53
    v_and_b32 v17, 1, v0
    v_lshlrev_b32 v17, 3, v17
    buffer_load_dwordx2 v[18:19], v17, s[44:47], s53 offen
    """)
    def allreduce(x, t, op="v_add_f32"):
        a(f"""s_nop 1
        {op}_dpp {x}, {x}, {x} quad_perm:[1,0,3,2] row_mask:0xf bank_mask:0xf
        s_nop 1
        {op}_dpp {x}, {x}, {x} quad_perm:[2,3,0,1] row_mask:0xf bank_mask:0xf
        s_nop 1
        {op}_dpp {x}, {x}, {x} row_ror:4 row_mask:0xf bank_mask:0xf
        s_nop 1
        {op}_dpp {x}, {x}, {x} row_ror:8 row_mask:0xf bank_mask:0xf
        v_mov_b32 {t}, {x}
        s_nop 1
        v_permlane16_swap_b32 {x}, {t}
        {op} {x}, {x}, {t}
        v_mov_b32 {t}, {x}
        s_nop 1
        v_permlane32_swap_b32 {x}, {t}
        {op} {x}, {x}, {t}""")
    def layernorm(P):
        F = [f"v{24+i}" for i in range(8)]
        for i in range(4):
            a(f"v_lshlrev_b32 {F[2*i]}, 16, {P[i]}\nv_and_b32 {F[2*i+1]}, s63, {P[i]}")
        a(f"""v_add_f32 v32, {F[0]}, {F[1]}
        v_add_f32 v33, {F[2]}, {F[3]}
        v_add_f32 v34, {F[4]}, {F[5]}
        v_add_f32 v35, {F[6]}, {F[7]}
        v_add_f32 v32, v32, v33
        v_add_f32 v34, v34, v35
        v_add_f32 v32, v32, v34""")
        allreduce("v32", "v33")
        a(f"""v_mul_f32 v32, s64, v32          ; mean (f32)
        v_mov_b32 v34, 0
        v_cvt_pk_bf16_f32 v33, v32, v32
        v_and_b32 v33, s63, v33
        s_mov_b64 exec, s[66:67]""")
        for i in range(8):
            a(f"v_sub_f32 v35, {F[i]}, v32\nv_fmac_f32 v34, v35, v35")
        a("s_mov_b64 exec, -1")
        allreduce("v34", "v35")
        a(f"""v_mul_f32 v34, s64, v34          ; var
        v_cvt_pk_bf16_f32 v34, v34, v34
        v_and_b32 v34, s63, v34
        v_add_f32 v34, {f2u(1e-5)}, v34
        v_cvt_pk_bf16_f32 v34, v34, v34
        v_and_b32 v34, s63, v34
        v_sqrt_f32 v34, v34
        s_nop 0
        v_cvt_pk_bf16_f32 v34, v34, v34
        v_and_b32 v34, s63, v34              ; den
        v_rcp_f32 v35, v34""")
        for i in range(4):
            a(f"""v_sub_f32 {F[2*i]}, {F[2*i]}, v33
            v_sub_f32 {F[2*i+1]}, {F[2*i+1]}, v33
            v_cvt_pk_bf16_f32 v36, {F[2*i]}, {F[2*i+1]}
            v_lshlrev_b32 {F[2*i]}, 16, v36
            v_and_b32 {F[2*i+1]}, s63, v36
            v_mul_f32 v36, {F[2*i]}, v35
            v_mul_f32 v37, {F[2*i+1]}, v35
            v_fma_f32 v38, -v36, v34, {F[2*i]}
            v_fma_f32 v39, -v37, v34, {F[2*i+1]}
            v_fmac_f32 v36, v38, v35
            v_fmac_f32 v37, v39, v35
            v_cvt_pk_bf16_f32 {P[i]}, v36, v37""")
        a("s_mov_b64 exec, s[66:67]\ns_not_b64 exec, exec")
        for i in range(4): a(f"v_mov_b32 {P[i]}, 0")
        a("s_mov_b64 exec, -1")
    def lds_wait(off, target, sleep=True):
        l = a.label("L_lw")
        a(f"""{l}:
        ds_read_b32 v40, v2 offset:{off}
        s_waitcnt lgkmcnt(0)
        v_readfirstlane_b32 s52, v40
        s_cmp_ge_u32 s52, {target}
        s_cbranch_scc1 {l}_ok
        {'s_sleep 1' if sleep else ''}
        s_branch {l}
        {l}_ok:""")
    def lds_arrive(off):
        a(f"""s_mov_b64 exec, 1
        v_mov_b32 v40, 1
        ds_add_u32 v2, v40 offset:{off}
        s_mov_b64 exec, -1""")
    def tag4(r):
        for i in range(4): a(f"v_bfi_b32 v{r+i}, s62, v43, v{r+i}")
    def dual_store(r, vaddr, soff, mask, sv):
        a(f"""s_mov_b64 exec, {mask}
        buffer_store_dwordx4 v[{r}:{r+3}], {vaddr}, s[36:39], {soff} offen
        s_add_u32 {soff}, {soff}, {DUAL}
        v_add_u32 v{sv+4}, {soff}, {vaddr}
        s_mov_b64 exec, -1""")
        for i in range(4): a(f"v_mov_b32 v{sv+i}, v{r+i}")
    SVQ, SVH, SVM, SVO = 184, 190, 196, 202
    def flush(tag, flag, svs):
        a(f"s_bitcmp1_b32 s6, {flag}\ns_cbranch_scc1 L_fl{flag}{tag}\ns_bitset1_b32 s6, {flag}")
        for sv in svs:
            a(f"buffer_store_dwordx4 v[{sv}:{sv+3}], v{sv+4}, s[36:39], 0 offen sc1")
        a(f"L_fl{flag}{tag}:")
    def flushQ(tag): flush(tag, 0, [SVQ, SVH])
    def flushO(tag): flush(tag, 1, [SVM, SVO])
    def pathsel(dst):
        a(f"""s_and_b32 {dst}, s59, {SLOW_EVERY}
        s_cmp_eq_u32 {dst}, {SLOW_EVERY}
        s_cselect_b32 {dst}, {DUAL}, 0""")
    def tagcheck(regs, fail, extra=None):
        a(f"v_xor_b32 v44, {regs[0]}, v43")
        rest = regs[1:]
        while rest:
            if len(rest) >= 2:
                a(f"v_xor_b32 v45, {rest[0]}, v43\nv_xor_b32 v46, {rest[1]}, v43\nv_or3_b32 v44, v44, v45, v46"); rest = rest[2:]
            else:
                a(f"v_xor_b32 v45, {rest[0]}, v43\nv_or_b32 v44, v44, v45"); rest = rest[1:]
        a("v_and_b32 v44, s62, v44")
        if extra: a(extra)
        a(f"""v_cmp_ne_u32 vcc, 0, v44
        s_add_u32 s59, s59, 1
        s_cmp_gt_u32 s59, {SPIN_MAX}
        s_cbranch_scc1 {fail}_ok
        s_cmp_lg_u64 vcc, 0
        s_cbranch_scc1 {fail}
        {fail}_ok:""")
    def gemv_tile(baddr, aaddr, abase, astep, acc):
        a(f"""ds_read2_b64 v[44:47], {baddr} offset0:0 offset1:4
        ds_read2_b64 v[48:51], {baddr} offset0:8 offset1:12
        ds_read2_b64 v[52:55], {baddr} offset0:16 offset1:20
        ds_read_b64 v[56:57], {baddr} offset:192""")
    def emit_final():
        fin = "L_stamps" if stamps else "L_end"
        a(f"""
        L_final:
        s_cmp_ge_u32 s5, 16
        s_cbranch_scc1 {fin}
        s_cmp_ge_u32 s68, 28
        s_cbranch_scc1 {fin}
        s_lshl_b32 s53, s68, 14
        s_and_b32 s54, s5, 3
        s_lshl_b32 s54, s54, 4
        s_add_u32 s53, s53, s54
        s_add_u32 s53, s53, {P3}
        s_add_u32 s54, s53, 4096
        s_add_u32 s55, s53, 8192
        s_add_u32 s56, s53, 12288
        v_lshlrev_b32 v80, 6, v0
        s_mov_b32 s59, 0
        v_lshlrev_b32 v51, 16, v51
        v_lshlrev_b32 v52, 16, v52
        v_add_f32 v51, v51, v52              ; x + b2
        L_ppoll:
        buffer_load_dwordx4 v[60:63], v80, s[36:39], s53 offen sc1
        buffer_load_dwordx4 v[64:67], v80, s[36:39], s54 offen sc1
        buffer_load_dwordx4 v[68:71], v80, s[36:39], s55 offen sc1
        buffer_load_dwordx4 v[72:75], v80, s[36:39], s56 offen sc1
        s_waitcnt vmcnt(0)
        """)
        tagcheck([f"v{60+i}" for i in range(16)], "L_ppoll")
        stamp(14)
        for i in range(4):
            a(f"v_add_f32 v{60+i}, v{60+i}, v{64+i}\nv_add_f32 v{68+i}, v{68+i}, v{72+i}")
        for i in range(4):
            a(f"v_add_f32 v{60+i}, v{60+i}, v{68+i}")
        a(f"""
        s_nop 1
        v_permlane32_swap_b32 v60, v61
        v_permlane32_swap_b32 v62, v63
        v_add_f32 v60, v60, v61
        v_add_f32 v62, v62, v63
        s_nop 1
        v_permlane16_swap_b32 v60, v62
        v_add_f32 v60, v60, v62              ; rows: a, c, b, d
        s_nop 1
        v_add_f32_dpp v60, v60, v60 quad_perm:[1,0,3,2] row_mask:0xf bank_mask:0xf
        s_nop 1
        v_add_f32_dpp v60, v60, v60 quad_perm:[2,3,0,1] row_mask:0xf bank_mask:0xf
        s_nop 1
        v_add_f32_dpp v60, v60, v60 row_ror:4 row_mask:0xf bank_mask:0xf
        s_nop 1
        v_add_f32_dpp v60, v60, v60 row_ror:8 row_mask:0xf bank_mask:0xf
        v_add_f32 v60, v60, v51
        v_cvt_pk_bf16_f32 v60, v60, v60
        s_mov_b32 s54, 0x00010001
        s_mov_b32 s55, 0x00010001
        s_lshl_b32 s53, s69, 3
        s_mov_b64 exec, s[54:55]
        buffer_store_short v60, v50, s[40:43], s53 offen
        s_mov_b64 exec, -1
        s_cmp_lg_u32 s2, 0
        s_cbranch_scc1 {fin}
        v_mov_b32 v60, s61
        v_mov_b32 v61, 0
        s_mov_b64 exec, 1
        buffer_store_dword v60, v61, s[36:39], 0 offen
        s_mov_b64 exec, -1
        """)

    a("s_waitcnt vmcnt(1)")
    stamp(2)
    P = ["v4", "v5", "v6", "v7"]
    layernorm(P)
    a("ds_write_b128 v16, v[4:7]")
    stamp(3)
    a(f"""
    s_lshr_b32 s53, s5, 3
    s_mul_i32 s53, s53, 224
    s_add_u32 s53, s53, s52
    v_lshlrev_b32 v41, 3, v9
    v_add_u32 v41, s53, v41
    ds_read2_b64 v[44:47], v41 offset0:0 offset1:4
    ds_read2_b64 v[48:51], v41 offset0:8 offset1:12
    ds_read2_b64 v[52:55], v41 offset0:16 offset1:20
    ds_read_b64 v[56:57], v41 offset:192
    s_lshl_b32 s53, s3, 5
    v_xor_b32 v42, s53, v14
    v_lshlrev_b32 v87, 4, v9             ; g4*16
    v_mov_b32 v58, 0
    v_mov_b32 v59, 0
    v_mov_b32 v74, 0
    v_mov_b32 v75, 0
    s_lshl_b32 s57, s4, 13
    s_lshr_b32 s54, s5, 3
    s_lshl_b32 s54, s54, 11
    s_add_u32 s57, s57, s54
    s_and_b32 s54, s5, 7
    s_lshl_b32 s54, s54, 8
    s_add_u32 s57, s57, s54
    s_lshl_b32 s54, s3, 6
    s_add_u32 s57, s57, s54
    s_add_u32 s57, s57, {QG}
    s_mov_b32 s54, 0x00010001
    s_mov_b32 s55, 0x00010001
    """)
    lds_wait(0, PR_WQ, sleep=False)
    stamp(4)
    def tr7(addr, base, step):
        for t in range(3):
            a(f"ds_read_b64_tr_b16 v[{60+4*t}:{61+4*t}], {addr} offset:{base + t*2*step}\nds_read_b64_tr_b16 v[{62+4*t}:{63+4*t}], {addr} offset:{base + t*2*step + step}")
        a(f"ds_read_b64_tr_b16 v[72:73], {addr} offset:{base + 6*step}")
    def mfma4(acc):
        a(f"""s_waitcnt lgkmcnt(5)
        v_mfma_f32_16x16x32_bf16 v[{acc}:{acc+3}], v[60:63], v[44:47], 0
        s_waitcnt lgkmcnt(3)
        v_mfma_f32_16x16x32_bf16 v[{acc}:{acc+3}], v[64:67], v[48:51], v[{acc}:{acc+3}]
        s_waitcnt lgkmcnt(1)
        v_mfma_f32_16x16x32_bf16 v[{acc}:{acc+3}], v[68:71], v[52:55], v[{acc}:{acc+3}]
        s_waitcnt lgkmcnt(0)
        v_mfma_f32_16x16x32_bf16 v[{acc}:{acc+3}], v[72:75], v[56:59], v[{acc}:{acc+3}]""")
    tr7("v42", WQL, 2048)
    a("s_add_u32 s61, s61, 1\ns_and_b32 s60, s61, 0xff\nv_mov_b32 v43, s60")
    mfma4(76)
    a("s_nop 7")
    tag4(76)
    dual_store(76, "v87", "s57", "s[54:55]", SVQ)
    stamp(5)
    a(f"""
    s_cmp_lt_u32 s3, 2
    s_cbranch_scc1 L_nomlp
    s_cmp_ge_u32 s5, 28
    s_cbranch_scc1 L_nomlp
    """)
    layernorm(P)
    a(f"""
    ds_write_b128 v16, v[4:7] offset:1024
    s_and_b32 s53, s5, 3
    s_mul_i32 s53, s53, 224
    s_lshl_b32 s52, s3, 11
    s_add_u32 s53, s53, s52
    s_add_u32 s53, s53, {XNL + 1024}
    v_lshlrev_b32 v41, 3, v9
    v_add_u32 v41, s53, v41
    ds_read2_b64 v[44:47], v41 offset0:0 offset1:4
    ds_read2_b64 v[48:51], v41 offset0:8 offset1:12
    ds_read2_b64 v[52:55], v41 offset0:16 offset1:20
    ds_read_b64 v[56:57], v41 offset:192
    s_and_b32 s53, s3, 1
    s_lshl_b32 s53, s53, 5
    v_xor_b32 v42, s53, v15
    s_lshl_b32 s57, s4, 12
    s_and_b32 s53, s5, 3
    s_lshl_b32 s53, s53, 10
    s_add_u32 s57, s57, s53
    s_lshr_b32 s53, s5, 2
    s_lshl_b32 s53, s53, 7
    s_add_u32 s57, s57, s53
    s_and_b32 s53, s3, 1
    s_lshl_b32 s53, s53, 6
    s_add_u32 s57, s57, s53
    s_add_u32 s57, s57, {HG}
    """)
    lds_wait(0, PR_W1)
    tr7("v42", W1L, 1024)
    mfma4(80)
    a("s_nop 7")
    tag4(80)
    dual_store(80, "v87", "s57", "s[54:55]", SVH)
    a("L_nomlp:")
    a(f"""
    v_and_b32 v88, 3, v8
    v_xor_b32 v88, v88, v9
    v_lshlrev_b32 v88, 4, v88
    v_and_b32 v89, 12, v8
    v_lshl_add_u32 v88, v89, 4, v88
    v_lshl_add_u32 v88, v8, 9, v88
    s_lshl_b32 s53, s3, 13
    s_add_u32 s53, s53, {KL}
    v_add_u32 v88, s53, v88
    v_xor_b32 v89, 64, v88
    v_xor_b32 v90, 0x80, v88
    v_xor_b32 v91, 0xc0, v88
    v_and_b32 v93, 1, v8
    v_lshlrev_b32 v92, 9, v93
    v_lshl_add_u32 v92, v9, 4, v92       ; q B addr: (j&1)*512 + g4*16
    v_lshlrev_b32 v93, 7, v93
    v_lshl_add_u32 v93, v9, 4, v93
    s_lshr_b32 s53, s3, 1
    s_lshl_b32 s53, s53, 6
    s_and_b32 s54, s3, 1
    s_lshl_b32 s54, s54, 3
    s_add_u32 s53, s53, s54
    v_add_u32 v94, s53, v93
    s_lshl_b32 s53, s3, 8
    v_lshlrev_b32 v95, 2, v0
    v_add_u32 v95, s53, v95
    v_lshrrev_b32 v80, 1, v8
    v_cmp_eq_u32 vcc, 0, v80
    v_cmp_eq_u32 s[54:55], 1, v80
    v_cmp_eq_u32 s[56:57], 2, v80
    v_cndmask_b32 v160, 0, -1, vcc
    v_cmp_eq_u32 vcc, 3, v80
    v_cndmask_b32 v161, 0, -1, s[54:55]
    v_cndmask_b32 v162, 0, -1, s[56:57]
    v_cndmask_b32 v163, 0, -1, vcc
    s_mov_b32 s59, 0
    s_lshl_b32 s53, s4, 13
    s_lshl_b32 s54, s3, 9
    s_add_u32 s53, s53, s54
    s_add_u32 s57, s53, {QG}
    v_lshlrev_b32 v59, 3, v0             ; lane*8
    s_mov_b32 s56, 0
    """)
    def qissue(r):
        pathsel("s53")
        a(f"""
        s_add_u32 s53, s53, s57
        s_add_u32 s54, s53, 4096
        buffer_load_dwordx2 v[{r}:{r+1}], v59, s[36:39], s53 offen sc1
        buffer_load_dwordx2 v[{r+2}:{r+3}], v59, s[36:39], s53 offen offset:2048 sc1
        buffer_load_dwordx2 v[{r+4}:{r+5}], v59, s[36:39], s54 offen sc1
        buffer_load_dwordx2 v[{r+6}:{r+7}], v59, s[36:39], s54 offen offset:2048 sc1
        s_add_u32 s59, s59, 1
        """)
    def kread(tag):
        a(f"""
        s_cmp_lg_u32 s56, 0
        s_cbranch_scc1 L_nk{tag}
        ds_read_b32 v40, v2
        s_waitcnt lgkmcnt(0)
        v_readfirstlane_b32 s52, v40
        s_cmp_lt_u32 s52, {PR_K}
        s_cbranch_scc1 L_nk{tag}
        s_mov_b32 s56, 1
        """)
        for t in range(8):
            a(f"ds_read_b128 v[{96+4*t}:{99+4*t}], v{88+(t&3)} offset:{(t>>2)*256}")
        a(f"L_nk{tag}:")
    def qcheck(r, ok):
        regs = [f"v{r+i}" for i in range(8)]
        a(f"v_xor_b32 v44, {regs[0]}, v43")
        rest = regs[1:]
        while rest:
            if len(rest) >= 2:
                a(f"v_xor_b32 v45, {rest[0]}, v43\nv_xor_b32 v46, {rest[1]}, v43\nv_or3_b32 v44, v44, v45, v46"); rest = rest[2:]
            else:
                a(f"v_xor_b32 v45, {rest[0]}, v43\nv_or_b32 v44, v44, v45"); rest = rest[1:]
        a(f"""v_and_b32 v44, s62, v44
        v_cmp_eq_u32 vcc, 0, v44
        s_cmp_gt_u32 s59, {SPIN_MAX}
        s_cbranch_scc1 {ok}
        s_cmp_eq_u64 vcc, -1
        s_cbranch_scc1 {ok}""")
    qissue(168)
    a(f"s_sleep {qsleep}")
    a(f"L_qpoll:\ns_cmp_lt_u32 s59, {TMO}\ns_cbranch_scc1 L_qnt")
    flushQ("t")
    a("L_qnt:")
    qissue(176)
    kread("a")
    a("s_waitcnt vmcnt(4)")
    qcheck(168, "L_qokA")
    qissue(168)
    kread("b")
    a("s_waitcnt vmcnt(4)")
    qcheck(176, "L_qokB")
    a("s_branch L_qpoll")
    a("L_qokB:")
    a(f"""
    v_add_f32 v44, v176, v178
    v_add_f32 v45, v177, v179
    v_add_f32 v46, v180, v182
    v_add_f32 v47, v181, v183
    s_branch L_qsum
    L_qokA:
    v_add_f32 v44, v168, v170
    v_add_f32 v45, v169, v171
    v_add_f32 v46, v172, v174
    v_add_f32 v47, v173, v175
    L_qsum:
    v_add_f32 v44, v44, v46
    v_add_f32 v45, v45, v47
    v_cvt_pk_bf16_f32 v44, v44, v45
    v_mov_b32 v40, 1
    ds_write_b32 v95, v44 offset:{QL}
    s_mov_b64 exec, 1
    ds_add_u32 v2, v40 offset:4
    s_mov_b64 exec, -1
    """)
    stamp(6)
    flushQ("n")
    a("s_cmp_lg_u32 s56, 0\ns_cbranch_scc1 L_kdone")
    lds_wait(0, PR_K, sleep=False)
    for t in range(8):
        a(f"ds_read_b128 v[{96+4*t}:{99+4*t}], v{88+(t&3)} offset:{(t>>2)*256}")
    a("L_kdone:")
    lds_wait(4, 4, sleep=False)
    stamp(7)
    for t in range(8):
        a(f"ds_read_b128 v[{128+4*t}:{131+4*t}], v92 offset:{QL + t*64}")
    for t in range(8):
        a(f"s_waitcnt lgkmcnt({7-t})")
        c = "0" if t == 0 else "v[76:79]"
        a(f"v_mfma_f32_16x16x32_bf16 v[76:79], v[{96+4*t}:{99+4*t}], v[{128+4*t}:{131+4*t}], {c}")
    a(f"""
    s_mov_b32 s54, 0x00030003
    s_mov_b32 s55, 0x00030003
    v_mov_b32 v40, 1
    s_nop 5
    v_cvt_pk_bf16_f32 v46, v76, v77
    v_cvt_pk_bf16_f32 v47, v78, v79
    s_mov_b64 exec, s[54:55]
    ds_write_b64 v94, v[46:47] offset:{SL}
    s_mov_b64 exec, 1
    ds_add_u32 v2, v40 offset:8
    s_mov_b64 exec, -1
    """)
    lds_wait(8, 4, sleep=False)
    a(f"""
    ds_read_b128 v[68:71], v93 offset:{SL}
    ds_read_b128 v[72:75], v93 offset:{SL+64}
    s_waitcnt lgkmcnt(0)
    """)
    E = [f"v{96+i}" for i in range(16)]
    for i in range(8):
        a(f"v_lshlrev_b32 {E[2*i]}, 16, v{68+i}\nv_and_b32 {E[2*i+1]}, s63, v{68+i}")
    a(f"""v_max3_f32 v76, {E[0]}, {E[1]}, {E[2]}
    v_max3_f32 v77, {E[3]}, {E[4]}, {E[5]}
    v_max3_f32 v78, {E[6]}, {E[7]}, {E[8]}
    v_max3_f32 v79, {E[9]}, {E[10]}, {E[11]}
    v_max3_f32 v76, v76, {E[12]}, {E[13]}
    v_max3_f32 v77, v77, {E[14]}, {E[15]}
    v_max3_f32 v76, v76, v77, v78
    v_max_f32 v76, v76, v79
    v_mov_b32 v77, v76
    s_nop 1
    v_permlane16_swap_b32 v76, v77
    v_max_f32 v76, v76, v77
    v_mov_b32 v77, v76
    s_nop 1
    v_permlane32_swap_b32 v76, v77
    v_max_f32 v76, v76, v77
    v_mul_f32 v79, s65, v76
    """)
    for i in range(16):
        a(f"v_fma_f32 {E[i]}, {E[i]}, s65, -v79\nv_exp_f32 {E[i]}, {E[i]}")
    a("s_nop 0")
    for i in range(8):
        a(f"v_cvt_pk_bf16_f32 v{68+i}, {E[2*i]}, {E[2*i+1]}")
    for T in range(4):
        for i in range(8):
            a(f"v_and_b32 v{128+8*T+i}, v{68+i}, v{160+T}")
    a(f"v_add_f32 v77, {E[0]}, {E[1]}\nv_add_f32 v78, {E[2]}, {E[3]}")
    for i in range(4, 16, 2):
        a(f"v_add_f32 v77, v77, {E[i]}\nv_add_f32 v78, v78, {E[i+1]}")
    a(f"""v_add_f32 v77, v77, v78
    v_mov_b32 v78, v77
    s_nop 1
    v_permlane16_swap_b32 v77, v78
    v_add_f32 v77, v77, v78
    v_mov_b32 v78, v77
    s_nop 1
    v_permlane32_swap_b32 v77, v78
    v_add_f32 v77, v77, v78              ; l
    s_cmp_lg_u32 s3, 0
    s_cbranch_scc1 L_noml
    v_mov_b32 v78, s61
    v_mov_b32 v79, s61
    s_lshl_b32 s53, s4, 10
    s_lshl_b32 s54, s5, 4
    s_add_u32 s53, s53, s54
    s_add_u32 s53, s53, {MLG}
    v_lshlrev_b32 v81, 9, v0
    """)
    dual_store(76, "v81", "s53", "3", SVM)
    a(f"""
    L_noml:
    s_lshl_b32 s53, s3, 10
    s_add_u32 s53, s53, {VL}
    v_and_b32 v81, 0x3ff, v14
    v_lshrrev_b32 v82, 1, v9
    v_lshl_add_u32 v81, v82, 12, v81
    v_add_u32 v81, s53, v81
    v_xor_b32 v82, 32, v81
    v_xor_b32 v83, 64, v81
    v_xor_b32 v84, 0x60, v81
    v_and_b32 v85, 1, v8
    v_lshlrev_b32 v85, 4, v85
    v_add_u32 v85, v85, v80              ; head*16 + T
    v_lshlrev_b32 v85, 11, v85
    v_lshl_add_u32 v85, v9, 4, v85
    s_lshl_b32 s53, s4, 16
    s_lshl_b32 s54, s3, 13
    s_add_u32 s53, s53, s54
    s_lshl_b32 s54, s5, 6
    s_add_u32 s53, s53, s54
    s_add_u32 s58, s53, {OG}
    """)
    a(f"""
    s_cmp_lg_u32 s3, 3
    s_cbranch_scc1 L_noh
    v_mov_b32 v68, 0
    v_mov_b32 v69, 0
    s_cmp_ge_u32 s5, 28
    s_cbranch_scc1 L_hw
    v_bfe_u32 v48, v0, 1, 2
    v_lshlrev_b32 v48, 10, v48
    v_and_b32 v49, 1, v0
    v_lshl_add_u32 v48, v49, 4, v48
    s_lshl_b32 s53, s4, 12
    s_lshl_b32 s54, s5, 5
    s_add_u32 s53, s53, s54
    s_add_u32 s57, s53, {HG}
    s_mov_b32 s59, 0
    L_hpoll:
    """)
    pathsel("s53")
    a("""s_add_u32 s53, s53, s57
    buffer_load_dwordx4 v[60:63], v48, s[36:39], s53 offen sc1
    s_waitcnt vmcnt(0)""")
    tagcheck(["v60", "v61", "v62", "v63"], "L_hpoll")
    for i in range(4):
        a(f"v_add_f32_dpp v{60+i}, v{60+i}, v{60+i} quad_perm:[2,3,0,1] row_mask:0xf bank_mask:0xf")
    a("s_nop 0")
    for i in range(4):
        a(f"v_add_f32_dpp v{60+i}, v{60+i}, v{60+i} row_ror:4 row_mask:0xf bank_mask:0xf")
    C1 = 0.7978845608028654; C2 = 0.044715
    a(f"""
    v_cvt_pk_bf16_f32 v64, v60, v61
    v_cvt_pk_bf16_f32 v65, v62, v63
    v_lshlrev_b32 v60, 16, v64
    v_and_b32 v61, s63, v64
    v_lshlrev_b32 v62, 16, v65
    v_and_b32 v63, s63, v65
    v_lshlrev_b32 v64, 16, v18
    v_and_b32 v65, s63, v18
    v_lshlrev_b32 v66, 16, v19
    v_and_b32 v67, s63, v19
    v_add_f32 v60, v60, v64
    v_add_f32 v61, v61, v65
    v_add_f32 v62, v62, v66
    v_add_f32 v63, v63, v67
    v_cvt_pk_bf16_f32 v64, v60, v61
    v_cvt_pk_bf16_f32 v65, v62, v63
    v_lshlrev_b32 v60, 16, v64
    v_and_b32 v61, s63, v64
    v_lshlrev_b32 v62, 16, v65
    v_and_b32 v63, s63, v65
    s_mov_b32 s53, {f2u(C2)}
    s_mov_b32 s54, {f2u(-2.0*C1*LOG2E)}
    """)
    for i in range(4):
        t = f"v{60+i}"; u = f"v{64+i}"
        a(f"""v_mul_f32 {u}, {t}, {t}
        v_mul_f32 {u}, s53, {u}
        v_fma_f32 {u}, {u}, {t}, {t}
        v_mul_f32 {u}, s54, {u}
        v_exp_f32 {u}, {u}
        s_nop 0
        v_add_f32 {u}, 1.0, {u}
        v_rcp_f32 {u}, {u}
        s_nop 0
        v_mul_f32 {t}, {t}, {u}""")
    a(f"""
    v_cvt_pk_bf16_f32 v68, v60, v61
    v_cvt_pk_bf16_f32 v69, v62, v63
    v_cmp_gt_u32 vcc, 2, v0
    s_nop 1
    v_cndmask_b32 v68, 0, v68, vcc
    v_cndmask_b32 v69, 0, v69, vcc
    L_hw:
    v_lshlrev_b32 v48, 3, v0
    s_mov_b64 exec, 15
    ds_write_b64 v48, v[68:69] offset:{OL+32}
    s_mov_b64 exec, -1
    L_noh:
    s_mov_b32 s54, 0x00ff00ff
    s_mov_b32 s55, 0x00ff00ff
    """)
    stamp(8)
    lds_wait(0, PR_V, sleep=False)
    stamp(9)
    for T in range(4):
        for hf in range(2):
            b = 96 + 8*T + 4*hf
            a(f"ds_read_b64_tr_b16 v[{b}:{b+1}], v{81+T} offset:{hf*16384}\nds_read_b64_tr_b16 v[{b+2}:{b+3}], v{81+T} offset:{hf*16384 + 8192}")
    k = 0
    for T in range(4):
        for hf in range(2):
            b = 96 + 8*T + 4*hf; pb = 128 + 8*T + 4*hf
            a(f"s_waitcnt lgkmcnt({14-2*k})")
            c = "0" if k == 0 else "v[76:79]"
            a(f"v_mfma_f32_16x16x32_bf16 v[76:79], v[{b}:{b+3}], v[{pb}:{pb+3}], {c}")
            k += 1
    a("s_nop 7")
    tag4(76)
    dual_store(76, "v85", "s58", "s[54:55]", SVO)
    stamp(10)
    a(f"""
    v_lshrrev_b32 v81, 1, v0
    v_lshlrev_b32 v86, 4, v81            ; sigma*16
    s_lshl_b32 s53, s4, 10
    s_lshr_b32 s54, s5, 4
    s_lshl_b32 s54, s54, 9
    s_add_u32 s53, s53, s54
    s_add_u32 s56, s53, {MLG}
    v_lshlrev_b32 v81, 6, v81
    v_and_b32 v82, 1, v0
    v_lshl_add_u32 v81, v82, 3, v81
    s_lshl_b32 s53, s4, 16
    s_lshl_b32 s54, s5, 11
    s_add_u32 s53, s53, s54
    s_lshl_b32 s54, s3, 4
    s_add_u32 s53, s53, s54
    s_add_u32 s57, s53, {OG}
    buffer_load_dwordx4 v[64:67], v86, s[36:39], s56 offen sc1
    buffer_load_dwordx2 v[60:61], v81, s[36:39], s57 offen sc1
    v_min_u32 v80, 2, v9
    v_lshl_add_u32 v80, v80, 3, v11
    v_mul_u32_u24 v80, 896, v80
    v_lshl_add_u32 v80, v10, 3, v80
    s_mul_i32 s53, s3, 224
    v_add_u32 v80, s53, v80
    v_and_b32 v83, 1, v9
    v_lshl_add_u32 v83, v82, 1, v83
    v_lshlrev_b32 v83, 1, v83
    s_lshl_b32 s54, s3, 3
    v_add_u32 v83, s54, v83
    v_lshlrev_b32 v84, 4, v9
    v_lshlrev_b32 v85, 14, v8
    v_lshl_add_u32 v85, v9, 4, v85
    s_mul_i32 s58, s3, {7*16384}
    s_lshl_b32 s54, s2, 6
    s_add_u32 s58, s58, s54
    s_add_u32 s58, s58, {P3}
    """)
    for T in range(0, 7, 2):
        a(f"v_cmp_eq_u32 vcc, {T}, v8")
        if T + 1 < 7: a(f"v_cmp_eq_u32 s[54:55], {T+1}, v8")
        else: a("s_nop 0")
        a(f"s_nop 0\nv_cndmask_b32 v{88+T}, 0, -1, vcc")
        if T + 1 < 7: a(f"v_cndmask_b32 v{88+T+1}, 0, -1, s[54:55]")
    a(f"""
    s_mov_b32 s59, 0
    s_mov_b32 s55, 0
    s_branch L_ochk
    L_opoll:
    s_cmp_lt_u32 s59, {TMO}
    s_cbranch_scc1 L_ont
    """)
    flushO("t")
    a("L_ont:")
    pathsel("s53")
    a(f"""
    s_add_u32 s54, s53, s56
    s_add_u32 s53, s53, s57
    buffer_load_dwordx4 v[64:67], v86, s[36:39], s54 offen sc1
    buffer_load_dwordx2 v[60:61], v81, s[36:39], s53 offen sc1
    L_ochk:
    s_cmp_lg_u32 s55, 0
    s_cbranch_scc1 L_owc
    ds_read_b32 v40, v2
    s_waitcnt lgkmcnt(0)
    v_readfirstlane_b32 s52, v40
    s_cmp_lt_u32 s52, {PR_ALL}
    s_cbranch_scc1 L_owc
    s_mov_b32 s55, 1
    """)
    def wc_reads():
        for T in range(7):
            b = 96 + 4*T
            a(f"ds_read_b64_tr_b16 v[{b}:{b+1}], v80 offset:{WCL + T*32}\nds_read_b64_tr_b16 v[{b+2}:{b+3}], v80 offset:{WCL + T*32 + 3584}")
    wc_reads()
    a("L_owc:\ns_waitcnt vmcnt(0)")
    tagcheck(["v60", "v61"], "L_opoll", extra="v_xor_b32 v45, s61, v66\nv_xor_b32 v46, s61, v67\nv_or3_b32 v44, v44, v45, v46")
    stamp(11)
    a("v_mov_b32 v62, v64")
    allreduce("v62", "v63", "v_max_f32")
    a(f"""
    v_sub_f32 v64, v64, v62
    v_mul_f32 v64, s65, v64
    v_exp_f32 v64, v64                   ; e_sigma
    s_nop 0
    v_mul_f32 v60, v60, v64
    v_mul_f32 v61, v61, v64
    v_mul_f32 v65, v65, v64              ; e*l
    v_mov_b32 v66, v65
    s_nop 0
    v_permlane16_swap_b32 v60, v61
    v_permlane16_swap_b32 v65, v66
    v_add_f32 v60, v60, v61
    v_add_f32 v65, v65, v66
    v_mov_b32 v61, v60
    v_mov_b32 v66, v65
    s_nop 0
    v_permlane32_swap_b32 v60, v61
    v_permlane32_swap_b32 v65, v66
    v_add_f32 v60, v60, v61
    v_add_f32 v65, v65, v66
    s_nop 0
    v_add_f32_dpp v60, v60, v60 quad_perm:[2,3,0,1] row_mask:0xf bank_mask:0xf
    v_add_f32_dpp v65, v65, v65 quad_perm:[2,3,0,1] row_mask:0xf bank_mask:0xf
    s_nop 0
    v_add_f32_dpp v60, v60, v60 row_ror:4 row_mask:0xf bank_mask:0xf
    v_add_f32_dpp v65, v65, v65 row_ror:4 row_mask:0xf bank_mask:0xf
    s_nop 0
    v_add_f32_dpp v60, v60, v60 row_ror:8 row_mask:0xf bank_mask:0xf
    v_add_f32_dpp v65, v65, v65 row_ror:8 row_mask:0xf bank_mask:0xf
    v_rcp_f32 v66, v65
    s_mov_b32 s52, 0x00030003
    s_mov_b32 s53, 0
    v_mul_f32 v61, v60, v66
    v_fma_f32 v62, -v61, v65, v60
    v_fmac_f32 v61, v62, v66
    v_cvt_pk_bf16_f32 v60, v61, v61
    s_mov_b64 exec, s[52:53]
    ds_write_b16 v83, v60 offset:{OL}
    s_mov_b64 exec, -1
    s_waitcnt lgkmcnt(0)
    s_barrier
    ds_read_b128 v[60:63], v84 offset:{OL}
    s_cmp_lg_u32 s55, 0
    s_cbranch_scc1 L_wcdone
    """)
    wc_reads()
    a("L_wcdone:")
    stamp(12)
    a("s_waitcnt lgkmcnt(0)")
    for T in range(7):
        bb = 128 + 4*T
        for i in range(4):
            a(f"v_and_b32 v{bb+i}, v{60+i}, v{88+T}")
        if T > 0:
            pb = 128 + 4*(T-1); pa = 96 + 4*(T-1)
            c = "0" if T == 1 else "v[76:79]"
            a(f"v_mfma_f32_16x16x32_bf16 v[76:79], v[{pa}:{pa+3}], v[{pb}:{pb+3}], {c}")
    a(f"""s_nop 1
    v_mfma_f32_16x16x32_bf16 v[76:79], v[120:123], v[152:155], v[76:79]
    s_mov_b32 s54, 0x007f007f
    s_mov_b32 s55, 0x007f007f
    s_nop 5
    """)
    tag4(76)
    a(f"""
    s_mov_b64 exec, s[54:55]
    buffer_store_dwordx4 v[76:79], v85, s[36:39], s58 offen sc1
    s_mov_b64 exec, -1
    """)
    stamp(13)
    flushO("n")
    a("s_branch " + ("L_stamps" if stamps else "L_end"))
    emit_final()
    if stamps:
        a("L_stamps:")
        stamp(15)
        a(f"""s_waitcnt lgkmcnt(0)
        s_mul_i32 s53, s2, {5*128}
        s_lshl_b32 s54, s3, 7
        s_add_u32 s53, s53, s54
        s_add_u32 s53, s53, {STAMP}
        v_mov_b32 v10, 0""")
        for i in range(16):
            a(f"v_mov_b32 v12, s{70+2*i}\nv_mov_b32 v13, s{71+2*i}\nbuffer_store_dwordx2 v[12:13], v10, s[36:39], s53 offen offset:{i*8}\ns_nop 1")
    a("L_end:\ns_endpgm")
    return wrap(a.text(), 256, 320, LDS_TOTAL, 208)

if __name__ == "__main__":
    for name, kw in (("a", dict(cap=20)), ("b", dict(cap=16)), ("c", dict(cap=20, wqx=4)), ("d", dict(cap=24))):
        open(f"k5{name}.s", "w").write(gen(**kw))
        open(f"k5s{name}.s", "w").write(gen(stamps=True, **kw))
```

```python
import sys, struct
from asmlib import *

SYNC = 0; OL = 64; SL = 128; QL = 512; XNL = 2048; WQL = 10240; WCL = 24576; W1L = 46080
KL = 53248; VL = 86016; LDS_TOTAL = 118784
HELLO = 0x180000; QG = 0x1000; HG = 0x12000; MLG = 0x1A000; OG = 0x20000; P3 = 0x100000
DUAL = 0x200000
STAMP = 0x8000000
SPIN_MAX = 200000
SLOW_EVERY = 127
TMO = 64
LOG2E = 1.4426950408889634
NW = 6
def f2u(f): return struct.unpack("<I", struct.pack("<f", f))[0]

def gen(cap=20, cap2=None, sw=53, stamps=False, wqx=None, qsleep=10, psleep=3, pretouch=True, noflush=False, p0=0, p1=0):
    a = Asm()
    def stamp(k):
        if stamps: a(f"s_memrealtime s[{70+2*k}:{71+2*k}]")
    FIN = "L_stamps" if stamps else "L_end"
    PR_WQ, PR_W1, PR_K, PR_V, PR_ALL = 1, 2, 3, 4, 5
    a("s_cmp_ge_u32 s2, 256\ns_cbranch_scc1 L_end")
    stamp(0)
    a(f"""
    s_load_dwordx2 s[20:21], s[0:1], 24
    s_load_dwordx2 s[8:9], s[0:1], 0
    s_load_dwordx2 s[36:37], s[0:1], 96
    s_load_dwordx2 s[28:29], s[0:1], 48
    s_load_dwordx2 s[12:13], s[0:1], 8
    s_load_dwordx2 s[16:17], s[0:1], 16
    s_load_dwordx2 s[24:25], s[0:1], 32
    s_load_dwordx2 s[32:33], s[0:1], 64
    s_load_dwordx2 s[40:41], s[0:1], 80
    s_load_dwordx2 s[44:45], s[0:1], 56
    s_load_dwordx2 s[48:49], s[0:1], 72
    s_getpc_b64 s[6:7]
    L_pc:
    s_lshr_b32 s5, s2, 3                 ; s
    s_mul_i32 s4, s5, {NW}
    v_lshrrev_b32 v1, 6, v0
    v_and_b32 v0, 63, v0                 ; lane
    v_add_u32 v2, s4, v1
    v_readfirstlane_b32 s3, v1
    v_and_b32 v2, 15, v2
    v_lshlrev_b32 v3, 4, v0              ; lane*16
    v_lshl_add_u32 v2, v2, 10, v3
    v_min_u32 v2, L_end-L_pc-16, v2
    global_load_dwordx4 v[164:167], v2, s[6:7]
    v_mov_b32 v2, {SYNC}
    v_mov_b32 v4, 0
    v_mov_b32 v5, 0
    v_mov_b32 v6, 0
    v_mov_b32 v7, 0
    ds_write_b128 v2, v[4:7]
    s_mov_b32 s10, 896
    s_mov_b32 s11, 0x20000
    s_mov_b32 s14, 0x2000000
    s_mov_b32 s15, 0x20000
    s_mov_b32 s18, 0x2000000
    s_mov_b32 s19, 0x20000
    s_mov_b32 s22, 3670016
    s_mov_b32 s23, 0x20000
    s_mov_b32 s26, 3670016
    s_mov_b32 s27, 0x20000
    s_mov_b32 s30, 1605632
    s_mov_b32 s31, 0x20000
    s_mov_b32 s34, 1605632
    s_mov_b32 s35, 0x20000
    s_mov_b32 s38, 0x10000000
    s_mov_b32 s39, 0x20000
    s_mov_b32 s42, 896
    s_mov_b32 s43, 0x20000
    s_mov_b32 s46, 3584
    s_mov_b32 s47, 0x20000
    s_mov_b32 s50, 896
    s_mov_b32 s51, 0x20000
    s_and_b32 s4, s2, 7                  ; g
    v_lshrrev_b32 v9, 4, v0              ; g4 = l>>4
    v_lshrrev_b32 v14, 3, v0             ; l>>3
    v_lshlrev_b32 v15, 1, v9
    v_and_b32 v13, 7, v0
    v_xor_b32 v13, v13, v15
    v_lshlrev_b32 v13, 4, v13
    v_lshl_add_u32 v16, v14, 13, v13
    v_add_u32 v17, {65536-1024}, v16
    v_add_u32 v18, {2*(65536-1024)}, v16
    v_add_u32 v19, {3*(65536-1024)}, v16
    s_and_b32 s52, s5, 7                 ; cb
    s_lshr_b32 s53, s5, 3                ; rho
    s_lshl_b32 s54, s4, 10
    s_lshl_b32 s52, s52, 7
    s_add_u32 s54, s54, s52
    s_mul_i32 s53, s53, {112*8192}
    s_add_u32 s54, s54, s53
    s_mov_b32 m0, {WQL}
    s_waitcnt lgkmcnt(0)
    s_cmp_eq_u32 s3, 4
    s_cbranch_scc1 L_loader
    buffer_load_dwordx4 v[4:7], v3, s[8:11], 0 offen
    s_load_dword s61, s[36:37], 0                          ; epoch
    s_barrier
    s_branch L_compute
    L_loader:
    s_setprio 3
    """)
    stamp(1)
    cnt = [0]
    marks = [14, 21, 53, 85]
    def group(loads):
        n = len(loads)
        c = cap if (cap2 is None or (marks and marks[0] <= 53)) else cap2
        if wqx is not None and marks and marks[0] == 14 and cnt[0] >= 14 and cnt[0] + n - 14 > wqx:
            c = min(cap, cnt[0] - 14 + n)
        if cnt[0] + n > c:
            a(f"s_waitcnt vmcnt({c - n})")
            landed = cnt[0] - (c - n)
            while marks and landed >= marks[0]:
                marks.pop(0)
                a("ds_write_b32 v2, v12\nv_add_u32 v12, 1, v12")
        for l in loads: a(l)
        cnt[0] += n
    for gi in range(4):
        n = min(4, 14 - 4*gi)
        if gi: a(f"s_mov_b32 m0, {WQL + gi*4096}\ns_add_u32 s54, s54, {4*65536}")
        group([f"buffer_load_dwordx4 v{16+k}, s[20:23], s54 offen offset:{k*1024} nt lds" for k in range(n)])
        if gi == 0: a("s_barrier\nv_mov_b32 v12, 1")
    a(f"""
    v_and_b32 v6, 1, v9
    v_lshlrev_b32 v6, 1, v6
    v_and_b32 v8, 3, v0
    v_xor_b32 v8, v8, v6
    v_lshlrev_b32 v8, 4, v8
    v_lshrrev_b32 v6, 2, v0
    v_mul_u32_u24 v20, 3584, v6
    v_add_u32 v20, v20, v8               ; w1 voffset
    v_add_u32 v21, {57344-1024}, v20
    v_add_u32 v22, {2*(57344-1024)}, v20
    v_add_u32 v23, {3*(57344-1024)}, v20
    s_lshr_b32 s52, s5, 2
    s_and_b32 s53, s5, 3
    s_mul_i32 s54, s4, 448
    s_lshl_b32 s52, s52, 6
    s_add_u32 s54, s54, s52
    s_mul_i32 s53, s53, {112*3584}
    s_add_u32 s54, s54, s53
    s_cmp_ge_u32 s5, 28
    s_mov_b32 m0, {W1L}
    s_cselect_b32 s54, 0x7000000, s54
    """)
    for gi in range(2):
        n = min(4, 7 - 4*gi)
        if gi: a(f"s_mov_b32 m0, {W1L + gi*4096}\ns_add_u32 s54, s54, {4*57344}")
        group([f"buffer_load_dwordx4 v{20+k}, s[28:31], s54 offen offset:{k*1024} nt lds" for k in range(n)])
    a(f"""
    v_lshrrev_b32 v6, 5, v0
    v_and_b32 v8, 31, v0
    v_xor_b32 v8, v8, v6
    v_lshlrev_b32 v8, 4, v8
    v_lshl_add_u32 v24, v6, 9, v8
    """)
    for n in range(1, 8): a(f"v_xor_b32 v{24+n}, {n<<5}, v24")
    a(f"""
    s_lshl_b32 s58, s4, 22
    s_lshl_b32 s52, s5, 15
    s_add_u32 s58, s58, s52
    s_add_u32 s58, s58, 3145728
    s_add_u32 s59, s5, s4                ; rotation
    v_lshl_add_u32 v32, v14, 9, v13
    v_add_u32 v32, 4096, v32
    v_subrev_u32 v33, 896, v32
    v_subrev_u32 v34, {2*896}, v32
    v_subrev_u32 v35, {3*896}, v32
    """)
    for gi in range(4):
        a(f"""s_add_u32 s52, s59, {gi}
        s_and_b32 s52, s52, 3
        s_lshl_b32 s52, s52, 13
        s_add_u32 m0, s52, {KL}
        s_add_u32 s54, s58, s52""")
        group([f"buffer_load_dwordx4 v{24+k}, s[12:15], s54 offen offset:{k*1024} nt lds" for k in range(4)])
        a(f"s_add_u32 m0, s52, {KL + 4096}\ns_add_u32 s54, s54, 4096")
        group([f"buffer_load_dwordx4 v{28+k}, s[12:15], s54 offen offset:{k*1024} nt lds" for k in range(4)])
    a("s_sub_u32 s58, s58, 4096")
    for gi in range(8):
        a(f"""s_add_u32 s52, s59, {gi}
        s_and_b32 s52, s52, 7
        s_lshl_b32 s52, s52, 12
        s_add_u32 m0, s52, {VL}
        s_add_u32 s54, s58, s52""")
        group([f"buffer_load_dwordx4 v{32+k}, s[16:19], s54 offen offset:{k*1024} nt lds" for k in range(4)])
    a(f"""
    s_lshl_b32 s54, s4, 9
    s_lshl_b32 s52, s5, 4
    s_add_u32 s54, s54, s52
    s_mov_b32 m0, {WCL}
    s_mul_i32 s54, s54, 896
    """)
    for gi in range(4):
        n = min(4, 14 - 4*gi)
        if gi: a(f"s_mov_b32 m0, {WCL + gi*4096}\ns_add_u32 s54, s54, 4096")
        group([f"buffer_load_dwordx4 v3, s[24:27], s54 offen offset:{k*1024} nt lds" for k in range(n)])
    a(f"""
    s_mul_i32 s54, s4, 224
    s_lshl_b32 s52, s5, 3
    s_add_u32 s54, s54, s52
    s_mul_i32 s54, s54, 896
    s_cmp_ge_u32 s5, 28
    s_mov_b32 m0, {WCL + 14336}
    s_cselect_b32 s54, 0x7000000, s54
    """)
    for gi in range(2):
        n = min(4, 7 - 4*gi)
        if gi: a(f"s_mov_b32 m0, {WCL + 14336 + gi*4096}\ns_add_u32 s54, s54, 4096")
        group([f"buffer_load_dwordx4 v3, s[32:35], s54 offen offset:{k*1024} nt lds" for k in range(n)])
    while marks:
        m = marks.pop(0)
        a(f"s_waitcnt vmcnt({cnt[0] - m})\nds_write_b32 v2, v12\nv_add_u32 v12, 1, v12")
    a("s_waitcnt vmcnt(0)\nds_write_b32 v2, v12\ns_waitcnt lgkmcnt(0)")
    stamp(2)
    a("s_branch L_stamps" if stamps else "s_endpgm")

    def allreduce(x, t, op="v_add_f32"):
        a(f"""s_nop 1
        {op}_dpp {x}, {x}, {x} quad_perm:[1,0,3,2] row_mask:0xf bank_mask:0xf
        s_nop 1
        {op}_dpp {x}, {x}, {x} quad_perm:[2,3,0,1] row_mask:0xf bank_mask:0xf
        s_nop 1
        {op}_dpp {x}, {x}, {x} row_ror:4 row_mask:0xf bank_mask:0xf
        s_nop 1
        {op}_dpp {x}, {x}, {x} row_ror:8 row_mask:0xf bank_mask:0xf
        v_mov_b32 {t}, {x}
        s_nop 1
        v_permlane16_swap_b32 {x}, {t}
        {op} {x}, {x}, {t}
        v_mov_b32 {t}, {x}
        s_nop 1
        v_permlane32_swap_b32 {x}, {t}
        {op} {x}, {x}, {t}""")
    def layernorm(P):
        F = [f"v{24+i}" for i in range(8)]
        for i in range(4):
            a(f"v_lshlrev_b32 {F[2*i]}, 16, {P[i]}\nv_and_b32 {F[2*i+1]}, s63, {P[i]}")
        a(f"""v_add_f32 v32, {F[0]}, {F[1]}
        v_add_f32 v33, {F[2]}, {F[3]}
        v_add_f32 v34, {F[4]}, {F[5]}
        v_add_f32 v35, {F[6]}, {F[7]}
        v_add_f32 v32, v32, v33
        v_add_f32 v34, v34, v35
        v_add_f32 v32, v32, v34""")
        allreduce("v32", "v33")
        a(f"""v_mul_f32 v32, s64, v32          ; mean (f32)
        v_mov_b32 v34, 0
        v_cvt_pk_bf16_f32 v33, v32, v32
        v_and_b32 v33, s63, v33
        s_mov_b64 exec, s[66:67]""")
        for i in range(8):
            a(f"v_sub_f32 v35, {F[i]}, v32\nv_fmac_f32 v34, v35, v35")
        a("s_mov_b64 exec, -1")
        allreduce("v34", "v35")
        a(f"""v_mul_f32 v34, s64, v34          ; var
        v_cvt_pk_bf16_f32 v34, v34, v34
        v_and_b32 v34, s63, v34
        v_add_f32 v34, {f2u(1e-5)}, v34
        v_cvt_pk_bf16_f32 v34, v34, v34
        v_and_b32 v34, s63, v34
        v_sqrt_f32 v34, v34
        s_nop 0
        v_cvt_pk_bf16_f32 v34, v34, v34
        v_and_b32 v34, s63, v34              ; den
        v_rcp_f32 v35, v34""")
        for i in range(4):
            a(f"""v_sub_f32 {F[2*i]}, {F[2*i]}, v33
            v_sub_f32 {F[2*i+1]}, {F[2*i+1]}, v33
            v_cvt_pk_bf16_f32 v36, {F[2*i]}, {F[2*i+1]}
            v_lshlrev_b32 {F[2*i]}, 16, v36
            v_and_b32 {F[2*i+1]}, s63, v36
            v_mul_f32 v36, {F[2*i]}, v35
            v_mul_f32 v37, {F[2*i+1]}, v35
            v_fma_f32 v38, -v36, v34, {F[2*i]}
            v_fma_f32 v39, -v37, v34, {F[2*i+1]}
            v_fmac_f32 v36, v38, v35
            v_fmac_f32 v37, v39, v35
            v_cvt_pk_bf16_f32 {P[i]}, v36, v37""")
        a("s_mov_b64 exec, s[66:67]\ns_not_b64 exec, exec")
        for i in range(4): a(f"v_mov_b32 {P[i]}, 0")
        a("s_mov_b64 exec, -1")
    def lds_wait(off, target, sleep=True):
        l = a.label("L_lw")
        a(f"""{l}:
        ds_read_b32 v40, v2 offset:{off}
        s_waitcnt lgkmcnt(0)
        v_readfirstlane_b32 s52, v40
        s_cmp_ge_u32 s52, {target}
        s_cbranch_scc1 {l}_ok
        {'s_sleep 1' if sleep else ''}
        s_branch {l}
        {l}_ok:""")
    def tag4(r):
        for i in range(4): a(f"v_bfi_b32 v{r+i}, s62, v43, v{r+i}")
    def fast_store(r, vaddr, soff, mask, sv):
        a(f"""s_mov_b64 exec, {mask}
        buffer_store_dwordx4 v[{r}:{r+3}], {vaddr}, s[36:39], {soff} offen
        s_add_u32 {soff}, {soff}, {DUAL}
        v_add_u32 v{sv+4}, {soff}, {vaddr}
        s_mov_b64 exec, -1""")
        for i in range(4): a(f"v_mov_b32 v{sv+i}, v{r+i}")
    SVQ, SVM, SVO = 168, 174, 180
    def flush(tag, flag, svs):
        if tag == "n":
            a(f"""s_cmp_eq_u32 s68, 1
            s_cbranch_scc1 L_fl{flag}{tag}""")
        a(f"s_bitcmp1_b32 s6, {flag}\ns_cbranch_scc1 L_fl{flag}{tag}\ns_bitset1_b32 s6, {flag}")
        for sv in svs:
            a(f"buffer_store_dwordx4 v[{sv}:{sv+3}], v{sv+4}, s[36:39], 0 offen sc1")
        a(f"L_fl{flag}{tag}:")
    def pathsel(dst):
        a(f"""s_and_b32 {dst}, s59, {SLOW_EVERY}
        s_cmp_eq_u32 {dst}, {SLOW_EVERY}
        s_cselect_b32 {dst}, {DUAL}, 0""")
    def tagor(regs):
        a(f"v_xor_b32 v44, {regs[0]}, v43")
        rest = regs[1:]
        while rest:
            if len(rest) >= 2:
                a(f"v_xor_b32 v45, {rest[0]}, v43\nv_xor_b32 v46, {rest[1]}, v43\nv_or3_b32 v44, v44, v45, v46"); rest = rest[2:]
            else:
                a(f"v_xor_b32 v45, {rest[0]}, v43\nv_or_b32 v44, v44, v45"); rest = rest[1:]
        a("v_and_b32 v44, s62, v44")
    def loopend(fail, needflag=None):
        a(f"""v_cmp_ne_u32 vcc, 0, v44
        s_add_u32 s59, s59, 1
        s_cmp_gt_u32 s59, {SPIN_MAX}
        s_cbranch_scc1 {fail}_ok""")
        if needflag: a(f"s_cmp_eq_u32 {needflag}, 0\ns_cbranch_scc1 {fail}")
        a(f"""s_cmp_lg_u64 vcc, 0
        s_cbranch_scc1 {fail}
        {fail}_ok:""")
    def bread(addr):
        a(f"""ds_read2_b64 v[44:47], {addr} offset0:0 offset1:4
        ds_read2_b64 v[48:51], {addr} offset0:8 offset1:12
        ds_read2_b64 v[52:55], {addr} offset0:16 offset1:20
        ds_read_b64 v[56:57], {addr} offset:192""")
    def tr7(addr, base, step):
        for t in range(3):
            a(f"ds_read_b64_tr_b16 v[{60+4*t}:{61+4*t}], {addr} offset:{base + t*2*step}\nds_read_b64_tr_b16 v[{62+4*t}:{63+4*t}], {addr} offset:{base + t*2*step + step}")
        a(f"ds_read_b64_tr_b16 v[72:73], {addr} offset:{base + 6*step}")
    def mfma4(acc):
        a(f"""s_waitcnt lgkmcnt(5)
        v_mfma_f32_16x16x32_bf16 v[{acc}:{acc+3}], v[60:63], v[44:47], 0
        s_waitcnt lgkmcnt(3)
        v_mfma_f32_16x16x32_bf16 v[{acc}:{acc+3}], v[64:67], v[48:51], v[{acc}:{acc+3}]
        s_waitcnt lgkmcnt(1)
        v_mfma_f32_16x16x32_bf16 v[{acc}:{acc+3}], v[68:71], v[52:55], v[{acc}:{acc+3}]
        s_waitcnt lgkmcnt(0)
        v_mfma_f32_16x16x32_bf16 v[{acc}:{acc+3}], v[72:75], v[56:59], v[{acc}:{acc+3}]""")

    a("L_compute:")
    stamp(1)
    a(f"""
    v_and_b32 v8, 15, v0                 ; j / lambda
    v_and_b32 v10, 3, v0                 ; c
    v_bfe_u32 v11, v0, 2, 2              ; r
    v_and_b32 v12, 1, v9
    v_lshlrev_b32 v12, 1, v12
    v_lshrrev_b32 v13, 1, v11
    v_or_b32 v12, v12, v13               ; phi
    v_lshl_add_u32 v13, v9, 2, v11       ; 4g4+r
    v_lshlrev_b32 v14, 7, v13
    v_lshl_add_u32 v14, v12, 5, v14
    v_lshl_add_u32 v14, v10, 3, v14
    s_min_u32 s7, s3, 4
    s_lshl_b32 s7, s7, 10
    s_add_u32 s7, s7, {XNL}
    v_add_u32 v16, s7, v3
    s_mov_b32 s6, 0
    s_mov_b32 s62, 0xff
    s_mov_b32 s63, 0xffff0000
    s_mov_b32 s64, {f2u(1.0/448)}
    s_mov_b32 s65, {f2u(LOG2E/16)}
    s_mov_b32 s66, -1
    s_mov_b32 s67, 0x00ffffff
    v_lshlrev_b32 v87, 4, v9             ; g4*16
    v_mov_b32 v58, 0
    v_mov_b32 v59, 0
    v_mov_b32 v74, 0
    v_mov_b32 v75, 0
    s_mov_b32 s68, 0
    s_cmp_lt_u32 s3, 4
    s_cbranch_scc1 L_nohello
    s_waitcnt lgkmcnt(0)
    s_add_u32 s61, s61, 1
    v_bfe_u32 v48, v0, 1, 2
    v_lshlrev_b32 v48, 10, v48
    v_and_b32 v49, 1, v0
    v_lshl_add_u32 v48, v49, 4, v48
    s_lshl_b32 s53, s4, 12
    s_lshl_b32 s54, s5, 5
    s_add_u32 s53, s53, s54
    s_add_u32 s53, s53, {HG}
    buffer_load_dwordx4 v[128:131], v48, s[36:39], s53 offen sc1
    s_waitcnt vmcnt(1)
    s_branch L_ln
    L_nohello:
    """)
    if pretouch:
        a(f"""
    s_lshl_b32 s53, s4, 13
    s_lshl_b32 s54, s3, 9
    s_add_u32 s53, s53, s54
    s_add_u32 s53, s53, {QG}
    s_add_u32 s54, s53, 4096
    v_lshlrev_b32 v40, 3, v0
    buffer_load_dwordx2 v[186:187], v40, s[36:39], s53 offen sc1
    buffer_load_dwordx2 v[188:189], v40, s[36:39], s53 offen offset:2048 sc1
    buffer_load_dwordx2 v[190:191], v40, s[36:39], s54 offen sc1
    buffer_load_dwordx2 v[192:193], v40, s[36:39], s54 offen offset:2048 sc1
    s_lshl_b32 s53, s4, 16
    s_lshl_b32 s54, s5, 11
    s_add_u32 s53, s53, s54
    s_lshl_b32 s54, s3, 9
    s_add_u32 s53, s53, s54
    s_add_u32 s53, s53, {OG}
    buffer_load_dwordx2 v[194:195], v40, s[36:39], s53 offen sc1
    s_lshl_b32 s53, s4, 10
    s_and_b32 s54, s3, 1
    s_lshl_b32 s54, s54, 9
    s_add_u32 s53, s53, s54
    s_add_u32 s53, s53, {MLG}
    buffer_load_dwordx2 v[196:197], v40, s[36:39], s53 offen sc1
    s_waitcnt vmcnt(6)
    """)
    else:
        a("s_waitcnt vmcnt(0)")
    stamp(2)
    a("L_ln:")
    layernorm(["v4", "v5", "v6", "v7"])
    a(f"""
    s_cmp_lt_u32 s3, 4
    s_cbranch_scc1 L_cw
    s_add_u32 s68, s68, 1
    s_cmp_eq_u32 s68, 1
    s_cbranch_scc1 L_ln
    s_branch L_aux
    L_cw:
    ds_write_b128 v16, v[4:7]
    """)
    stamp(3)
    a(f"""
    s_lshr_b32 s53, s5, 3
    s_mul_i32 s53, s53, 224
    s_add_u32 s53, s53, s7
    v_lshl_add_u32 v41, v9, 3, s53
    """)
    bread("v41")
    a(f"""
    s_lshl_b32 s53, s3, 5
    v_xor_b32 v42, s53, v14
    v_mov_b32 v{SVQ+4}, 0x7ff00000
    v_mov_b32 v{SVM+4}, 0x7ff00000
    v_mov_b32 v{SVO+4}, 0x7ff00000
    s_lshl_b32 s57, s4, 13
    s_lshr_b32 s54, s5, 3
    s_lshl_b32 s54, s54, 11
    s_add_u32 s57, s57, s54
    s_and_b32 s54, s5, 7
    s_lshl_b32 s54, s54, 8
    s_add_u32 s57, s57, s54
    s_lshl_b32 s54, s3, 6
    s_add_u32 s57, s57, s54
    s_add_u32 s57, s57, {QG}
    s_mov_b32 s54, 0x00010001
    s_mov_b32 s55, 0x00010001
    """)
    lds_wait(0, PR_WQ, sleep=False)
    stamp(4)
    tr7("v42", WQL, 2048)
    a("""s_add_u32 s61, s61, 1
    s_and_b32 s60, s61, 0xff
    v_mov_b32 v43, s60
    s_getreg_b32 s7, hwreg(HW_REG_XCC_ID)
    s_and_b32 s7, s7, 15
    s_lshl_b32 s7, s7, 24
    s_xor_b32 s7, s7, s61""")
    mfma4(76)
    a("s_nop 7")
    tag4(76)
    fast_store(76, "v87", "s57", "s[54:55]", SVQ)
    stamp(5)
    a(f"""
    v_and_b32 v88, 3, v8
    v_xor_b32 v88, v88, v9
    v_lshlrev_b32 v88, 4, v88
    v_and_b32 v89, 12, v8
    v_lshl_add_u32 v88, v89, 4, v88
    v_lshl_add_u32 v88, v8, 9, v88
    s_lshl_b32 s53, s3, 13
    s_add_u32 s53, s53, {KL}
    v_add_u32 v88, s53, v88
    v_xor_b32 v89, 64, v88
    v_xor_b32 v90, 0x80, v88
    v_xor_b32 v91, 0xc0, v88
    v_and_b32 v93, 1, v8
    v_lshlrev_b32 v92, 9, v93
    v_lshl_add_u32 v92, v9, 4, v92       ; q B addr: (j&1)*512 + g4*16
    v_lshlrev_b32 v93, 7, v93
    v_lshl_add_u32 v93, v9, 4, v93
    s_lshr_b32 s53, s3, 1
    s_lshl_b32 s53, s53, 6
    s_and_b32 s54, s3, 1
    s_lshl_b32 s54, s54, 3
    s_add_u32 s53, s53, s54
    v_add_u32 v94, s53, v93
    s_lshl_b32 s53, s3, 8
    v_lshl_add_u32 v95, v0, 2, s53
    v_lshrrev_b32 v80, 1, v8             ; T = j>>1
    v_cmp_eq_u32 vcc, 0, v80
    v_cmp_eq_u32 s[54:55], 1, v80
    v_cmp_eq_u32 s[56:57], 2, v80
    v_cndmask_b32 v160, 0, -1, vcc
    v_cmp_eq_u32 vcc, 3, v80
    v_cndmask_b32 v161, 0, -1, s[54:55]
    v_cndmask_b32 v162, 0, -1, s[56:57]
    v_cndmask_b32 v163, 0, -1, vcc
    s_lshl_b32 s53, s3, 10
    s_add_u32 s53, s53, {VL}
    v_and_b32 v81, 0x3ff, v14
    v_lshrrev_b32 v82, 1, v9
    v_lshl_add_u32 v81, v82, 12, v81
    v_add_u32 v81, s53, v81
    v_xor_b32 v82, 32, v81
    v_xor_b32 v83, 64, v81
    v_xor_b32 v84, 0x60, v81
    v_and_b32 v85, 1, v8
    v_lshl_add_u32 v85, v85, 4, v80      ; head*16 + T
    v_lshlrev_b32 v85, 11, v85
    v_lshl_add_u32 v85, v9, 4, v85
    s_lshl_b32 s53, s4, 16
    s_lshl_b32 s54, s3, 13
    s_add_u32 s53, s53, s54
    s_lshl_b32 s54, s5, 6
    s_add_u32 s53, s53, s54
    s_add_u32 s58, s53, {OG}
    s_mov_b32 s59, 0
    s_lshl_b32 s53, s4, 13
    s_lshl_b32 s54, s3, 9
    s_add_u32 s53, s53, s54
    s_add_u32 s57, s53, {QG}
    v_lshlrev_b32 v59, 3, v0             ; lane*8
    s_mov_b32 s56, 0
    """)
    QA, QB = 186, 194
    def qissue(r):
        pathsel("s53")
        a(f"""
        s_add_u32 s53, s53, s57
        s_add_u32 s54, s53, 4096
        buffer_load_dwordx2 v[{r}:{r+1}], v59, s[36:39], s53 offen sc1
        buffer_load_dwordx2 v[{r+2}:{r+3}], v59, s[36:39], s53 offen offset:2048 sc1
        buffer_load_dwordx2 v[{r+4}:{r+5}], v59, s[36:39], s54 offen sc1
        buffer_load_dwordx2 v[{r+6}:{r+7}], v59, s[36:39], s54 offen offset:2048 sc1
        s_add_u32 s59, s59, 1
        """)
    def qcheck(r, ok):
        tagor([f"v{r+i}" for i in range(8)])
        a(f"""v_cmp_eq_u32 vcc, 0, v44
        s_cmp_gt_u32 s59, {SPIN_MAX}
        s_cbranch_scc1 {ok}
        s_cmp_eq_u64 vcc, -1
        s_cbranch_scc1 {ok}""")
    qissue(QA)
    a(f"s_sleep {qsleep}")
    a(f"L_qpoll:\ns_cmp_lt_u32 s59, {TMO}\ns_cbranch_scc1 L_qnt")
    flush("t", 0, [SVQ])
    a("s_waitcnt vmcnt(4)\nL_qnt:")
    qissue(QB)
    a("s_waitcnt vmcnt(4)")
    qcheck(QA, "L_qokA")
    qissue(QA)
    a("s_waitcnt vmcnt(4)")
    qcheck(QB, "L_qokB")
    a("s_branch L_qpoll")
    a(f"""L_qokB:
    v_add_f32 v60, v{QB}, v{QB+2}
    v_add_f32 v61, v{QB+1}, v{QB+3}
    v_add_f32 v64, v{QB+4}, v{QB+6}
    v_add_f32 v65, v{QB+5}, v{QB+7}
    s_branch L_qsum
    L_qokA:
    v_add_f32 v60, v{QA}, v{QA+2}
    v_add_f32 v61, v{QA+1}, v{QA+3}
    v_add_f32 v64, v{QA+4}, v{QA+6}
    v_add_f32 v65, v{QA+5}, v{QA+7}
    L_qsum:
    v_add_f32 v60, v60, v64
    v_add_f32 v61, v61, v65
    v_cvt_pk_bf16_f32 v60, v60, v61
    v_mov_b32 v40, 1
    ds_write_b32 v95, v60 offset:{QL}
    s_mov_b64 exec, 1
    ds_add_u32 v2, v40 offset:4
    s_mov_b64 exec, -1
    """)
    stamp(6)
    lds_wait(0, PR_K, sleep=False)
    for t in range(8):
        a(f"ds_read_b128 v[{96+4*t}:{99+4*t}], v{88+(t&3)} offset:{(t>>2)*256}")
    lds_wait(4, 4, sleep=False)
    stamp(7)
    for t in range(8):
        a(f"ds_read_b128 v[{128+4*t}:{131+4*t}], v92 offset:{QL + t*64}")
    for t in range(8):
        a(f"s_waitcnt lgkmcnt({7-t})")
        c = "0" if t == 0 else "v[76:79]"
        a(f"v_mfma_f32_16x16x32_bf16 v[76:79], v[{96+4*t}:{99+4*t}], v[{128+4*t}:{131+4*t}], {c}")
    a(f"""
    s_mov_b32 s54, 0x00030003
    s_mov_b32 s55, 0x00030003
    v_mov_b32 v40, 1
    s_nop 5
    v_cvt_pk_bf16_f32 v46, v76, v77
    v_cvt_pk_bf16_f32 v47, v78, v79
    s_mov_b64 exec, s[54:55]
    ds_write_b64 v94, v[46:47] offset:{SL}
    s_mov_b64 exec, 1
    ds_add_u32 v2, v40 offset:8
    s_mov_b64 exec, -1
    """)
    lds_wait(8, 4, sleep=False)
    a(f"""
    ds_read_b128 v[68:71], v93 offset:{SL}
    ds_read_b128 v[72:75], v93 offset:{SL+64}
    s_waitcnt lgkmcnt(0)
    """)
    E = [f"v{96+i}" for i in range(16)]
    for i in range(8):
        a(f"v_lshlrev_b32 {E[2*i]}, 16, v{68+i}\nv_and_b32 {E[2*i+1]}, s63, v{68+i}")
    a(f"""v_max3_f32 v76, {E[0]}, {E[1]}, {E[2]}
    v_max3_f32 v77, {E[3]}, {E[4]}, {E[5]}
    v_max3_f32 v78, {E[6]}, {E[7]}, {E[8]}
    v_max3_f32 v79, {E[9]}, {E[10]}, {E[11]}
    v_max3_f32 v76, v76, {E[12]}, {E[13]}
    v_max3_f32 v77, v77, {E[14]}, {E[15]}
    v_max3_f32 v76, v76, v77, v78
    v_max_f32 v76, v76, v79
    v_mov_b32 v77, v76
    s_nop 1
    v_permlane16_swap_b32 v76, v77
    v_max_f32 v76, v76, v77
    v_mov_b32 v77, v76
    s_nop 1
    v_permlane32_swap_b32 v76, v77
    v_max_f32 v76, v76, v77
    v_mul_f32 v79, s65, v76
    """)
    for i in range(16):
        a(f"v_fma_f32 {E[i]}, {E[i]}, s65, -v79\nv_exp_f32 {E[i]}, {E[i]}")
    a("s_nop 0")
    for i in range(8):
        a(f"v_cvt_pk_bf16_f32 v{68+i}, {E[2*i]}, {E[2*i+1]}")
    for T in range(4):
        for i in range(8):
            a(f"v_and_b32 v{128+8*T+i}, v{68+i}, v{160+T}")
    a(f"""s_cmp_lg_u32 s3, 0
    s_cbranch_scc1 L_noml""")
    a(f"v_add_f32 v77, {E[0]}, {E[1]}\nv_add_f32 v78, {E[2]}, {E[3]}")
    for i in range(4, 16, 2):
        a(f"v_add_f32 v77, v77, {E[i]}\nv_add_f32 v78, v78, {E[i+1]}")
    a(f"""v_add_f32 v77, v77, v78
    v_mov_b32 v78, v77
    s_nop 1
    v_permlane16_swap_b32 v77, v78
    v_add_f32 v77, v77, v78
    v_mov_b32 v78, v77
    s_nop 1
    v_permlane32_swap_b32 v77, v78
    v_add_f32 v77, v77, v78              ; l
    v_mov_b32 v78, s61
    v_mov_b32 v79, s7
    s_lshl_b32 s53, s4, 10
    s_lshl_b32 s54, s5, 4
    s_add_u32 s53, s53, s54
    s_add_u32 s53, s53, {MLG}
    v_lshlrev_b32 v86, 9, v0
    """)
    fast_store(76, "v86", "s53", "3", SVM)
    a(f"""
    L_noml:
    s_mov_b32 s54, 0x00ff00ff
    s_mov_b32 s55, 0x00ff00ff
    """)
    stamp(8)
    lds_wait(0, PR_V, sleep=False)
    stamp(9)
    for T in range(4):
        for hf in range(2):
            b = 96 + 8*T + 4*hf
            a(f"ds_read_b64_tr_b16 v[{b}:{b+1}], v{81+T} offset:{hf*16384}\nds_read_b64_tr_b16 v[{b+2}:{b+3}], v{81+T} offset:{hf*16384 + 8192}")
    k = 0
    for T in range(4):
        for hf in range(2):
            b = 96 + 8*T + 4*hf; pb = 128 + 8*T + 4*hf
            a(f"s_waitcnt lgkmcnt({14-2*k})")
            c = "0" if k == 0 else "v[76:79]"
            a(f"v_mfma_f32_16x16x32_bf16 v[76:79], v[{b}:{b+3}], v[{pb}:{pb+3}], {c}")
            k += 1
    a("s_nop 7")
    tag4(76)
    fast_store(76, "v85", "s58", "s[54:55]", SVO)
    stamp(10)
    a(f"""
    v_lshrrev_b32 v81, 1, v0
    v_lshlrev_b32 v86, 4, v81            ; sigma*16
    s_lshl_b32 s53, s4, 10
    s_lshr_b32 s54, s5, 4
    s_lshl_b32 s54, s54, 9
    s_add_u32 s53, s53, s54
    s_add_u32 s56, s53, {MLG}
    v_lshlrev_b32 v81, 6, v81
    v_and_b32 v82, 1, v0
    v_lshl_add_u32 v81, v82, 3, v81
    s_lshl_b32 s53, s4, 16
    s_lshl_b32 s54, s5, 11
    s_add_u32 s53, s53, s54
    s_lshl_b32 s54, s3, 4
    s_add_u32 s53, s53, s54
    s_add_u32 s57, s53, {OG}
    v_min_u32 v80, 2, v9
    v_lshl_add_u32 v80, v80, 3, v11
    v_mul_u32_u24 v80, 896, v80
    v_lshl_add_u32 v80, v10, 3, v80
    s_mul_i32 s53, s3, 224
    v_add_u32 v80, s53, v80
    v_and_b32 v83, 1, v9
    v_lshl_add_u32 v83, v82, 1, v83
    v_lshlrev_b32 v83, 1, v83
    s_lshl_b32 s54, s3, 3
    v_add_u32 v83, s54, v83
    v_lshlrev_b32 v85, 14, v8
    v_lshl_add_u32 v85, v9, 4, v85
    s_mul_i32 s58, s3, {7*16384}
    s_lshl_b32 s54, s2, 6
    s_add_u32 s58, s58, s54
    s_add_u32 s58, s58, {P3}
    """)
    for T in range(0, 7, 2):
        a(f"v_cmp_eq_u32 vcc, {T}, v8")
        if T + 1 < 7: a(f"v_cmp_eq_u32 s[54:55], {T+1}, v8")
        else: a("s_nop 0")
        a(f"s_nop 0\nv_cndmask_b32 v{88+T}, 0, -1, vcc")
        if T + 1 < 7: a(f"v_cndmask_b32 v{88+T+1}, 0, -1, s[54:55]")
    a(f"""
    s_mov_b32 s59, 0
    s_mov_b32 s55, 0
    L_opoll:
    s_cmp_lt_u32 s59, {TMO}
    s_cbranch_scc1 L_ont
    """)
    flush("t", 1, [SVQ, SVM, SVO])
    a("L_ont:")
    pathsel("s53")
    a(f"""
    s_add_u32 s54, s53, s56
    s_add_u32 s53, s53, s57
    buffer_load_dwordx4 v[64:67], v86, s[36:39], s54 offen sc1
    buffer_load_dwordx2 v[60:61], v81, s[36:39], s53 offen sc1
    s_cmp_lg_u32 s55, 0
    s_cbranch_scc1 L_owc
    ds_read_b32 v40, v2
    s_waitcnt lgkmcnt(0)
    v_readfirstlane_b32 s52, v40
    s_cmp_lt_u32 s52, {PR_ALL}
    s_cbranch_scc1 L_owc
    L_wcrd:
    s_add_u32 s55, s55, 1
    """)
    for T in range(7):
        b = 96 + 4*T
        a(f"ds_read_b64_tr_b16 v[{b}:{b+1}], v80 offset:{WCL + T*32}\nds_read_b64_tr_b16 v[{b+2}:{b+3}], v80 offset:{WCL + T*32 + 3584}")
    a("s_cmp_gt_u32 s55, 1\ns_cbranch_scc1 L_wcdone")
    a("L_owc:\ns_waitcnt vmcnt(0)")
    tagor(["v60", "v61"])
    a("v_xor_b32 v45, s61, v66\nv_xor_b32 v46, s61, v67\nv_lshlrev_b32 v46, 8, v46\nv_or3_b32 v44, v44, v45, v46")
    loopend("L_opoll")
    stamp(11)
    a("""v_cmp_ne_u32 vcc, s7, v67
    v_mov_b32 v62, v64
    s_cmp_eq_u64 vcc, 0
    s_cselect_b32 s68, 1, 2
    v_mov_b32 v40, s68
    ds_write_b32 v2, v40 offset:12""")
    allreduce("v62", "v63", "v_max_f32")
    a(f"""
    v_sub_f32 v64, v64, v62
    v_mul_f32 v64, s65, v64
    v_exp_f32 v64, v64                   ; e_sigma
    s_nop 0
    v_mul_f32 v60, v60, v64
    v_mul_f32 v61, v61, v64
    v_mul_f32 v65, v65, v64              ; e*l
    v_mov_b32 v66, v65
    s_nop 0
    v_permlane16_swap_b32 v60, v61
    v_permlane16_swap_b32 v65, v66
    v_add_f32 v60, v60, v61
    v_add_f32 v65, v65, v66
    v_mov_b32 v61, v60
    v_mov_b32 v66, v65
    s_nop 0
    v_permlane32_swap_b32 v60, v61
    v_permlane32_swap_b32 v65, v66
    v_add_f32 v60, v60, v61
    v_add_f32 v65, v65, v66
    s_nop 0
    v_add_f32_dpp v60, v60, v60 quad_perm:[2,3,0,1] row_mask:0xf bank_mask:0xf
    v_add_f32_dpp v65, v65, v65 quad_perm:[2,3,0,1] row_mask:0xf bank_mask:0xf
    s_nop 0
    v_add_f32_dpp v60, v60, v60 row_ror:4 row_mask:0xf bank_mask:0xf
    v_add_f32_dpp v65, v65, v65 row_ror:4 row_mask:0xf bank_mask:0xf
    s_nop 0
    v_add_f32_dpp v60, v60, v60 row_ror:8 row_mask:0xf bank_mask:0xf
    v_add_f32_dpp v65, v65, v65 row_ror:8 row_mask:0xf bank_mask:0xf
    v_rcp_f32 v66, v65
    s_mov_b32 s52, 0x00030003
    s_mov_b32 s53, 0
    v_mul_f32 v61, v60, v66
    v_fma_f32 v62, -v61, v65, v60
    v_fmac_f32 v61, v62, v66
    v_cvt_pk_bf16_f32 v60, v61, v61
    s_mov_b64 exec, s[52:53]
    ds_write_b16 v83, v60 offset:{OL}
    s_mov_b64 exec, -1
    s_waitcnt lgkmcnt(0)
    s_barrier
    ds_read_b128 v[60:63], v87 offset:{OL}
    s_cmp_lg_u32 s55, 0
    s_cbranch_scc1 L_wcdone
    s_mov_b32 s55, 1
    s_branch L_wcrd
    L_wcdone:
    """)
    stamp(12)
    a("s_waitcnt lgkmcnt(0)")
    for T in range(7):
        bb = 128 + 4*T
        for i in range(4):
            a(f"v_and_b32 v{bb+i}, v{60+i}, v{88+T}")
        if T > 0:
            pb = 128 + 4*(T-1); pa = 96 + 4*(T-1)
            c = "0" if T == 1 else "v[76:79]"
            a(f"v_mfma_f32_16x16x32_bf16 v[76:79], v[{pa}:{pa+3}], v[{pb}:{pb+3}], {c}")
    a(f"""s_nop 1
    v_mfma_f32_16x16x32_bf16 v[76:79], v[120:123], v[152:155], v[76:79]
    s_mov_b32 s54, 0x007f007f
    s_mov_b32 s55, 0x007f007f
    s_nop 5
    """)
    tag4(76)
    a(f"""
    s_mov_b64 exec, s[54:55]
    buffer_store_dwordx4 v[76:79], v85, s[36:39], s58 offen sc1
    s_mov_b64 exec, -1
    """)
    stamp(13)
    if not noflush: flush("n", 1, [SVQ, SVM, SVO])
    if stamps: a("s_mov_b32 s98, s68\ns_mov_b32 s99, 0")
    a(f"s_branch {FIN}")

    a("L_aux:")
    stamp(3)
    a(f"""
    ds_write_b128 v16, v[4:7]            ; y
    s_lshr_b32 s68, s5, 2
    s_lshl_b32 s54, s4, 2
    s_add_u32 s68, s68, s54
    s_and_b32 s54, s5, 3
    s_lshl_b32 s69, s68, 2
    s_add_u32 s69, s69, s54
    v_lshlrev_b32 v20, 1, v9
    v_and_b32 v20, 2, v20
    v_lshrrev_b32 v21, 1, v9
    v_or_b32 v20, v20, v21               ; colmap
    v_lshlrev_b32 v20, 1, v20
    s_lshl_b32 s54, s69, 3
    buffer_load_ushort v21, v20, s[8:11], s54 offen          ; x[col]
    buffer_load_ushort v22, v20, s[48:51], s54 offen         ; b2[col]
    s_and_b32 s60, s61, 0xff
    v_mov_b32 v43, s60
    v_mov_b32 v104, 0x7ff00000
    v_mov_b32 v110, 0x7ff00000
    s_cmp_ge_u32 s5, 28
    s_cbranch_scc1 L_hchk

    ; b1 quad
    s_mul_i32 s53, s4, 224
    s_lshl_b32 s54, s5, 3
    s_add_u32 s53, s53, s54
    s_lshl_b32 s53, s53, 1               ; f0*2
    v_and_b32 v17, 1, v0
    v_lshlrev_b32 v17, 3, v17
    buffer_load_dwordx2 v[18:19], v17, s[44:47], s53 offen
    s_and_b32 s53, s5, 3
    s_mul_i32 s53, s53, 224
    s_add_u32 s53, s53, s7
    v_lshl_add_u32 v41, v9, 3, s53
    """)
    bread("v41")
    a(f"""
    v_lshlrev_b32 v15, 6, v13
    v_and_b32 v42, 1, v9
    v_lshl_add_u32 v15, v42, 5, v15
    v_lshl_add_u32 v42, v10, 3, v15
    s_lshl_b32 s57, s4, 12
    s_and_b32 s53, s5, 3
    s_lshl_b32 s53, s53, 10
    s_add_u32 s57, s57, s53
    s_lshr_b32 s53, s5, 2
    s_lshl_b32 s53, s53, 7
    s_add_u32 s57, s57, s53
    s_add_u32 s57, s57, {HG}
    s_add_u32 s56, s57, {DUAL}
    s_mov_b32 s54, 0x00010001
    s_mov_b32 s55, 0x00010001
    """)
    lds_wait(0, PR_W1)
    for T in range(2):
        sv = 100 + 6*T
        tr7("v42", W1L, 1024)
        mfma4(sv)
        a("s_nop 7")
        tag4(sv)
        a(f"""
        s_mov_b64 exec, s[54:55]
        buffer_store_dwordx4 v[{sv}:{sv+3}], v87, s[36:39], s57 offen
        v_add_u32 v{sv+4}, s56, v87
        s_mov_b64 exec, -1
        v_xor_b32 v42, 32, v42
        s_add_u32 s57, s57, 64
        s_add_u32 s56, s56, 64
        """)
    a(f"""
    L_hchk:
    v_mov_b32 v68, 0
    v_mov_b32 v69, 0
    s_cmp_ge_u32 s5, 28
    s_cbranch_scc1 L_hw
    """)
    stamp(12)
    a(f"""
    v_bfe_u32 v48, v0, 1, 2
    v_lshlrev_b32 v48, 10, v48
    v_and_b32 v49, 1, v0
    v_lshl_add_u32 v48, v49, 4, v48
    s_lshl_b32 s53, s4, 12
    s_lshl_b32 s54, s5, 5
    s_add_u32 s53, s53, s54
    s_add_u32 s57, s53, {HG}
    s_mov_b32 s59, 0
    L_hpoll:
    s_cmp_lg_u32 s59, 6
    s_cbranch_scc1 L_hnt
    buffer_store_dwordx4 v[100:103], v104, s[36:39], 0 offen sc1
    buffer_store_dwordx4 v[106:109], v110, s[36:39], 0 offen sc1
    L_hnt:
    s_sleep 4
    s_and_b32 s53, s59, 7
    s_cmp_eq_u32 s53, 7
    s_cselect_b32 s53, {DUAL}, 0
    s_add_u32 s53, s53, s57
    buffer_load_dwordx4 v[60:63], v48, s[36:39], s53 offen sc1
    s_waitcnt vmcnt(0)
    """)
    tagor(["v60", "v61", "v62", "v63"])
    loopend("L_hpoll")
    stamp(13)
    for i in range(4):
        a(f"v_add_f32_dpp v{60+i}, v{60+i}, v{60+i} quad_perm:[2,3,0,1] row_mask:0xf bank_mask:0xf")
    a("s_nop 0")
    for i in range(4):
        a(f"v_add_f32_dpp v{60+i}, v{60+i}, v{60+i} row_ror:4 row_mask:0xf bank_mask:0xf")
    C1 = 0.7978845608028654; C2 = 0.044715
    a(f"""
    v_cvt_pk_bf16_f32 v64, v60, v61
    v_cvt_pk_bf16_f32 v65, v62, v63
    v_lshlrev_b32 v60, 16, v64
    v_and_b32 v61, s63, v64
    v_lshlrev_b32 v62, 16, v65
    v_and_b32 v63, s63, v65
    v_lshlrev_b32 v64, 16, v18
    v_and_b32 v65, s63, v18
    v_lshlrev_b32 v66, 16, v19
    v_and_b32 v67, s63, v19
    v_add_f32 v60, v60, v64
    v_add_f32 v61, v61, v65
    v_add_f32 v62, v62, v66
    v_add_f32 v63, v63, v67
    v_cvt_pk_bf16_f32 v64, v60, v61
    v_cvt_pk_bf16_f32 v65, v62, v63
    v_lshlrev_b32 v60, 16, v64
    v_and_b32 v61, s63, v64
    v_lshlrev_b32 v62, 16, v65
    v_and_b32 v63, s63, v65
    s_mov_b32 s53, {f2u(C2)}
    s_mov_b32 s54, {f2u(-2.0*C1*LOG2E)}
    """)
    for i in range(4):
        t = f"v{60+i}"; u = f"v{64+i}"
        a(f"""v_mul_f32 {u}, {t}, {t}
        v_mul_f32 {u}, s53, {u}
        v_fma_f32 {u}, {u}, {t}, {t}
        v_mul_f32 {u}, s54, {u}
        v_exp_f32 {u}, {u}
        s_nop 0
        v_add_f32 {u}, 1.0, {u}
        v_rcp_f32 {u}, {u}
        s_nop 0
        v_mul_f32 {t}, {t}, {u}""")
    a(f"""
    v_cvt_pk_bf16_f32 v68, v60, v61
    v_cvt_pk_bf16_f32 v69, v62, v63
    v_cmp_gt_u32 vcc, 2, v0
    s_nop 1
    v_cndmask_b32 v68, 0, v68, vcc
    v_cndmask_b32 v69, 0, v69, vcc
    L_hw:
    v_lshlrev_b32 v48, 3, v0
    s_mov_b64 exec, 15
    ds_write_b64 v48, v[68:69] offset:{OL+32}
    s_mov_b64 exec, -1
    s_lshl_b32 s53, s68, 14
    s_and_b32 s54, s5, 3
    s_lshl_b32 s54, s54, 4
    s_add_u32 s53, s53, s54
    s_add_u32 s53, s53, {P3}
    s_add_u32 s54, s53, 4096
    s_add_u32 s55, s53, 8192
    s_add_u32 s56, s53, 12288
    v_lshlrev_b32 v80, 6, v0
    s_mov_b32 s59, 0
    s_waitcnt vmcnt(0) lgkmcnt(0)
    v_lshlrev_b32 v21, 16, v21
    v_lshlrev_b32 v22, 16, v22
    v_add_f32 v21, v21, v22              ; x + b2
    """)
    a(f"""
    s_barrier
    ds_read_b32 v40, v2 offset:12
    s_waitcnt lgkmcnt(0)
    v_readfirstlane_b32 s52, v40
    s_cmp_eq_u32 s52, 1
    s_cbranch_scc1 L_hnb
    buffer_store_dwordx4 v[100:103], v104, s[36:39], 0 offen sc1
    buffer_store_dwordx4 v[106:109], v110, s[36:39], 0 offen sc1
    L_hnb:
    s_cmp_ge_u32 s5, 16
    s_cbranch_scc1 {FIN}
    s_cmp_ge_u32 s68, 28
    s_cbranch_scc1 {FIN}
    """)
    MK = ("s[56:57]", "s[58:59]", "s[64:65]", "s[66:67]")
    a("""s_mov_b32 s52, s56
    s_mov_b64 s[56:57], -1
    s_mov_b64 s[58:59], -1
    s_mov_b64 s[64:65], -1
    s_mov_b64 s[66:67], -1
    s_mov_b32 s63, 0""")
    if p0: a(f"s_sleep {p0}")
    a("L_ppoll:")
    if p1: a(f"s_sleep {p1}")
    for i, so in enumerate(("s53", "s54", "s55", "s52")):
        a(f"s_mov_b64 exec, {MK[i]}\ns_cbranch_execz L_psk{i}\nbuffer_load_dwordx4 v[{128+4*i}:{131+4*i}], v80, s[36:39], {so} offen sc1\nL_psk{i}:")
    a("s_mov_b64 exec, -1\ns_waitcnt vmcnt(0)")
    for i in range(4):
        r = 128 + 4*i
        a(f"""v_xor_b32 v44, v{r}, v43
        v_xor_b32 v45, v{r+1}, v43
        v_xor_b32 v46, v{r+2}, v43
        v_or3_b32 v44, v44, v45, v46
        v_xor_b32 v45, v{r+3}, v43
        v_or_b32 v44, v44, v45
        v_and_b32 v44, s62, v44
        v_cmp_ne_u32 {MK[i]}, 0, v44""")
    a(f"""s_add_u32 s63, s63, 1
    s_or_b64 s[6:7], s[56:57], s[58:59]
    s_or_b64 s[6:7], s[6:7], s[64:65]
    s_cmp_gt_u32 s63, {SPIN_MAX}
    s_cbranch_scc1 L_psum
    s_or_b64 s[6:7], s[6:7], s[66:67]
    s_cbranch_scc1 L_ppoll
    L_psum:""")
    for i in range(4):
        a(f"v_add_f32 v{60+i}, v{128+i}, v{132+i}\nv_add_f32 v{68+i}, v{136+i}, v{140+i}")
    stamp(14)
    for i in range(4):
        a(f"v_add_f32 v{60+i}, v{60+i}, v{68+i}")
    a(f"""
    s_nop 1
    v_permlane32_swap_b32 v60, v61
    v_permlane32_swap_b32 v62, v63
    v_add_f32 v60, v60, v61
    v_add_f32 v62, v62, v63
    s_nop 1
    v_permlane16_swap_b32 v60, v62
    v_add_f32 v60, v60, v62              ; rows: a, c, b, d
    s_nop 1
    v_add_f32_dpp v60, v60, v60 quad_perm:[1,0,3,2] row_mask:0xf bank_mask:0xf
    s_nop 1
    v_add_f32_dpp v60, v60, v60 quad_perm:[2,3,0,1] row_mask:0xf bank_mask:0xf
    s_nop 1
    v_add_f32_dpp v60, v60, v60 row_ror:4 row_mask:0xf bank_mask:0xf
    s_nop 1
    v_add_f32_dpp v60, v60, v60 row_ror:8 row_mask:0xf bank_mask:0xf
    v_add_f32 v60, v60, v21
    v_cvt_pk_bf16_f32 v60, v60, v60
    s_mov_b32 s54, 0x00010001
    s_mov_b32 s55, 0x00010001
    s_lshl_b32 s53, s69, 3
    s_mov_b64 exec, s[54:55]
    buffer_store_short v60, v20, s[40:43], s53 offen
    s_mov_b64 exec, -1
    s_cmp_lg_u32 s2, 0
    s_cbranch_scc1 {FIN}
    v_mov_b32 v60, s61
    v_mov_b32 v61, 0
    s_mov_b64 exec, 1
    buffer_store_dword v60, v61, s[36:39], 0 offen
    s_mov_b64 exec, -1
    """)
    if stamps:
        a("L_stamps:")
        stamp(15)
        a("s_cmp_eq_u32 s3, 4\ns_cbranch_scc1 L_nosl\ns_sleep 127\ns_sleep 127\nL_nosl:")
        a(f"""s_waitcnt lgkmcnt(0)
        s_mul_i32 s53, s2, {NW*128}
        s_lshl_b32 s54, s3, 7
        s_add_u32 s53, s53, s54
        s_add_u32 s53, s53, {STAMP}
        v_mov_b32 v10, 0""")
        for i in range(16):
            a(f"v_mov_b32 v12, s{70+2*i}\nv_mov_b32 v13, s{71+2*i}\nbuffer_store_dwordx2 v[12:13], v10, s[36:39], s53 offen offset:{i*8}\ns_nop 1")
    a("L_end:\ns_endpgm")
    return wrap(a.text(), 256, 64*NW, LDS_TOTAL, 208)

if __name__ == "__main__":
    for name, kw in (("h", dict(p0=20)), ("k", dict(p0=28)), ("l", dict(p0=36)), ("m", dict(p0=20, p1=2)), ("n", dict(p0=28, p1=2))):
        kw.update(cap=20, cap2=44)
        open(f"k14{name}.s", "w").write(gen(**kw))
        open(f"k14s{name}.s", "w").write(gen(stamps=True, **kw))
```
